```python
import torch

def _softmax(x, axis=-1):
    return torch.softmax(x, dim=axis)
def _gelu(x):
    return torch.nn.functional.gelu(x, approximate="tanh")
def _silu(x):
    return torch.nn.functional.silu(x)
def _sigmoid(x):
    return torch.sigmoid(x)
def _layernorm(x, axis=-1, eps=1e-5):
    m = x.mean(dim=axis, keepdim=True)
    v = x.var(dim=axis, keepdim=True, unbiased=False)
    return (x - m) / torch.sqrt(v + eps)
def _scatter_add(tgt, idx, src, axis=0):
    return tgt.clone().index_add_(axis, idx, src)
def _segment_sum(src, seg, n):
    out = torch.zeros((n,) + src.shape[1:], dtype=src.dtype)
    return out.index_add_(0, seg, src)
def _pad(x, pw):
    flat = tuple(v for pair in reversed(pw) for v in pair)
    return torch.nn.functional.pad(x, flat)

kernel_name = 'gated_mix__linear_kernel_hedgehog__dense_activation_gelu__prompt'

def setup_inputs():

    _w = (lambda a: (lambda t: t.to(torch.bfloat16) if t.is_floating_point() else t)(torch.as_tensor(a)))
    def _A_setup():
        B, S, D, H = 1, 2048, 512, 32
        Dh = D // H
        return {
            "x": _w((lambda *s: torch.randn(*s, dtype=torch.bfloat16) * 0.05)(B, S, D)),
            "wqkv": _w((lambda *s: torch.randn(*s, dtype=torch.bfloat16) * 0.8)(D, 3 * D)),
            "w_phi": _w((lambda *s: torch.randn(*s, dtype=torch.bfloat16) * 0.8)(H, Dh, Dh) * (Dh ** -0.5)),
            "wo": _w((lambda *s: torch.randn(*s, dtype=torch.bfloat16) * 0.05)(D, D)),
        }
    _A_in = _A_setup()

    def _B_setup():
        B, S, D, F = 1, 2048, 512, 1376
        return {
            "x": _w((lambda *s: torch.randn(*s, dtype=torch.bfloat16) * 0.05)(B, S, D)),
            "w1": _w((lambda *s: torch.randn(*s, dtype=torch.bfloat16) * 3.2)(D, F) * (D ** -0.5)),
            "b1": _w((lambda *s: torch.randn(*s, dtype=torch.bfloat16) * 3.2)(F) * 0.01),
            "w2": _w((lambda *s: torch.randn(*s, dtype=torch.bfloat16) * 0.2)(F, D) * (F ** -0.5)),
            "b2": _w((lambda *s: torch.randn(*s, dtype=torch.bfloat16) * 0.4)(D) * 0.01),
        }
    _B_in = _B_setup()

    return {
        "A_x": _A_in["x"],
        "A_wqkv": _A_in["wqkv"],
        "A_w_phi": _A_in["w_phi"],
        "A_wo": _A_in["wo"],
        "B_x": _B_in["x"],
        "B_w1": _B_in["w1"],
        "B_b1": _B_in["b1"],
        "B_w2": _B_in["w2"],
        "B_b2": _B_in["b2"],
        "gate_w": _w((lambda *s: torch.randn(*s, dtype=torch.bfloat16) * 0.05)(512) * 16.0),
    }

def reference(A_x, A_wqkv, A_w_phi, A_wo, B_x, B_w1, B_b1, B_w2, B_b2, gate_w):
    def _A_ref(x, wqkv, w_phi, wo):
        B, S, D = x.shape
        H = 32; Dh = D // H
        qkv = (lambda x, *d: x.permute(*d))((x @ wqkv).reshape(B, S, 3, H, Dh), 2, 0, 3, 1, 4)
        q, k, v = qkv[0], qkv[1], qkv[2]
        pq = torch.einsum("bhsd,hdf->bhsf", q, w_phi)
        pk = torch.einsum("bhsd,hdf->bhsf", k, w_phi)
        phi_q = torch.concatenate([_softmax(pq, axis=-1), _softmax(-pq, axis=-1)], axis=-1)
        phi_k = torch.concatenate([_softmax(pk, axis=-1), _softmax(-pk, axis=-1)], axis=-1)
        kv = torch.einsum("bhsf,bhsd->bhfd", phi_k, v)
        z  = torch.einsum("bhsf->bhf", phi_k)
        num = torch.einsum("bhqf,bhfd->bhqd", phi_q, kv)
        den = torch.einsum("bhqf,bhf->bhq", phi_q, z)[..., None] + 1e-6
        o = num / den
        return (lambda x, *d: x.permute(*d))(o, 0, 2, 1, 3).reshape(B, S, D) @ wo

    def _B_ref(x, w1, b1, w2, b2):
        h = torch.einsum("bsd,df->bsf", x, w1) + b1
        h = _gelu(h)
        return torch.einsum("bsf,fd->bsd", h, w2) + b2

    x = A_x
    g = _sigmoid((x * gate_w).sum(-1, keepdims=True))
    a = _A_ref(x, A_wqkv, A_w_phi, A_wo)
    b = _B_ref(x, B_w1, B_b1, B_w2, B_b2)
    return g * a + (1 - g) * b
```

```python
import sys

NAME = 'gated_mix__linear_kernel_hedgehog__dense_activation_gelu__prompt'

WS_E = 0
WS_FP1 = 0x1000
WS_FKV = 0x10000
WS_G = 0x20000
WS_KVP = 0x40000
KVP_SZ = 4352
WS_ACT = 0x100000
ACT_TB = 120 * 1024
WS_STAMP = 0x1000000
WS_SIZE = 0x2000000
OOB = 0x70000000

SLOT = 8192
MISC = 19 * SLOT
L_WPHI = MISC
L_ZERO = MISC + 2048
L_TAB = MISC + 2176
LDS_BYTES = 163840

LOG2E = 0x3fb8aa3b


def f2u(x):
    import struct
    return struct.unpack('<I', struct.pack('<f', x))[0]


class Gen:
    def __init__(self, opt):
        self.o = opt
        self.L = []
        self.vm = []
        self.nlab = 0
        self.nstamp = 0

    def e(self, s):
        self.L.append('  ' + s)

    def c(self, s):
        self.L.append('  ; ' + s)

    def lab(self, s):
        self.L.append(s + ':')

    def newlab(self, p):
        self.nlab += 1
        return f'L_{p}{self.nlab}'

    def vmop(self, s, tag, cond=False):
        self.e(s)
        self.vm.append((tag, cond))

    def vmwait(self, tags, extra=''):
        if isinstance(tags, str):
            tags = [tags]
        last = -1
        for i, (t, cnd) in enumerate(self.vm):
            if t in tags:
                last = i
        if last < 0:
            if extra:
                self.e(f's_waitcnt {extra}')
            return
        n = sum(1 for (t, cnd) in self.vm[last + 1:] if not cnd)
        assert n <= 63
        self.e(f's_waitcnt vmcnt({n}) {extra}'.rstrip())
        self.vm = self.vm[last + 1:]

    def vmall(self):
        self.e('s_waitcnt vmcnt(0)')
        self.vm = []

    def nop(self, n):
        while n > 0:
            k = min(n, 16)
            self.e(f's_nop {k - 1}')
            n -= k

    def stamp(self, i):
        if not self.o.get('stamps'):
            return
        self.e('s_memtime s[98:99]')
        self.e('s_waitcnt lgkmcnt(0)')
        self.e(f's_mov_b32 s{80 + i}, s98')


def vr(a, n=1):
    return f'v{a}' if n == 1 else f'v[{a}:{a + n - 1}]'


SX, SW1, SW2, SWO, SWS, SOUT, SSM = 32, 36, 40, 44, 48, 52, 56
sW, sTG, sGRP, sCGI, sTT, sCT, sW1K, sW2K = 60, 61, 62, 63, 64, 65, 66, 67
sTAG = 68
sXO = 70
sWO_ = 71
sT0, sT1, sT2, sT3 = 72, 73, 74, 75
sVAL = 76
sC = 78
sCNT = 79
sW2O = 30
sACT = 31


def srd(r):
    return f's[{r}:{r + 3}]'


def build(opt):
    g = Gen(opt)
    e, c = g.e, g.c

    vL = 1
    vXA0, vXA1, vWA, vWA2, vW2A = 2, 3, 4, 5, 6
    vXR = 8
    vT = 12
    vL16 = 7
    vG = 20
    vTmp = 28

    def mksrd(r, lo, size):
        e(f's_mov_b32 s{r}, s{lo}')
        e(f's_mov_b32 s{r + 1}, s{lo + 1}')
        e(f's_mov_b32 s{r + 2}, {size}')
        e(f's_mov_b32 s{r + 3}, 0x20000')

    e('s_cmp_ge_u32 s2, 256')
    e('s_cbranch_scc1 L_end')
    e('s_load_dwordx16 s[4:19], s[0:1], 0')
    e('s_load_dwordx8 s[20:27], s[0:1], 64')
    e('s_load_dwordx2 s[28:29], s[0:1], 96')
    if opt.get('stamps'):
        e('s_memrealtime s[96:97]')
        e('s_memtime s[98:99]')
    e(f'v_lshrrev_b32 v{vTmp}, 6, v0')
    e(f'v_and_b32 v{vL}, 63, v0')
    e(f'v_readfirstlane_b32 s{sW}, v{vTmp}')
    e(f's_and_b32 s{sT0}, s2, 7')
    e(f's_lshr_b32 s{sT1}, s2, 3')
    e(f's_and_b32 s{sTG}, s{sT0}, 1')
    e(f's_lshl_b32 s{sTG}, s{sTG}, 3')
    e(f's_and_b32 s{sT2}, s{sT1}, 7')
    e(f's_add_u32 s{sTG}, s{sTG}, s{sT2}')
    e(f's_lshr_b32 s{sT2}, s{sT0}, 1')
    e(f's_lshr_b32 s{sT3}, s{sT1}, 3')
    e(f's_lshl_b32 s{sCGI}, s{sT2}, 2')
    e(f's_add_u32 s{sCGI}, s{sCGI}, s{sT3}')
    e(f's_lshl_b32 s{sGRP}, s{sT2}, 1')
    e(f's_and_b32 s{sT3}, s{sT3}, 1')
    e(f's_add_u32 s{sGRP}, s{sGRP}, s{sT3}')
    e(f's_lshl_b32 s{sTT}, s{sT0}, 2')
    e(f's_and_b32 s{sT2}, s{sT1}, 3')
    e(f's_add_u32 s{sTT}, s{sTT}, s{sT2}')
    e(f's_lshr_b32 s{sCT}, s{sT1}, 2')
    e(f's_lshl_b32 s{sW1K}, s{sW}, 10')
    e(f's_lshl_b32 s{sW2K}, s{sW}, 11')
    e(f's_lshl_b32 s{sXO}, s{sTG}, 17')
    e(f's_lshl_b32 s{sW2O}, s{sCT}, 7')
    e(f's_mov_b32 s{sC}, {hex(LOG2E)}')
    e(f'v_lshlrev_b32 v{vL16}, 4, v{vL}')
    a, b = vTmp, vTmp + 1
    e(f'v_lshrrev_b32 v{a}, 3, v{vL}')
    e(f'v_lshrrev_b32 v{b}, 4, v{vL}')
    e(f'v_and_b32 v{vXA0}, 7, v{vL}')
    e(f'v_xor_b32 v{vXA0}, v{vXA0}, v{b}')
    e(f'v_lshlrev_b32 v{vXA0}, 4, v{vXA0}')
    e(f'v_lshl_add_u32 v{vXA0}, v{a}, 10, v{vXA0}')
    e(f's_lshl_b32 s{sT0}, s{sW}, 14')
    e(f'v_add_u32 v{vXA0}, s{sT0}, v{vXA0}')
    e(f'v_xor_b32 v{vXA1}, 64, v{vXA0}')
    e(f'v_add_u32 v{vXA1}, {8192 - 1024}, v{vXA1}')
    e(f'v_and_b32 v{b}, 1, v{b}')
    e(f'v_lshlrev_b32 v{b}, 2, v{b}')
    e(f'v_and_b32 v{vWA2}, 7, v{vL}')
    e(f'v_xor_b32 v{vWA2}, v{vWA2}, v{b}')
    e(f'v_lshlrev_b32 v{vWA2}, 4, v{vWA2}')
    e(f's_lshl_b32 s{sT0}, s{sW}, 3')
    e(f'v_add_u32 v{a}, s{sT0}, v{a}')
    e(f'v_lshl_add_u32 v{vW2A}, v{a}, 10, v{vWA2}')
    e('s_waitcnt lgkmcnt(0)')
    if opt.get('stamps'):
        e('s_mov_b32 s80, s98')
    e(f's_load_dword s{sTAG}, s[28:29], {WS_E}')
    mksrd(SX, 4, 2048 * 1024)
    mksrd(SW2, 18, 1376 * 1024)
    mksrd(SWO, 10, 512 * 1024)
    mksrd(SWS, 28, WS_SIZE)
    mksrd(SOUT, 24, 2048 * 1024)

    if opt.get('touch', 1):
        lt = g.newlab('touch')
        t = vTmp + 2
        e(f'v_lshlrev_b32 v{t}, 7, v{vL}')
        items = [(4, 2048 * 1024, 64), (6, 512 * 3072, 48), (14, 512 * 2752, 43), (18, 1376 * 1024, 43), (10, 512 * 1024, 16)]
        for i, (lo, size, n) in enumerate(items):
            nx = g.newlab('tn')
            e(f's_cmp_lg_u32 s{sW}, {i}')
            e(f's_cbranch_scc1 {nx}')
            mksrd(SSM, lo, size)
            e(f's_mul_i32 s{sT0}, s2, {n * 128}')
            if n < 64:
                e(f's_mov_b64 exec, {hex((1 << n) - 1)}' if n <= 16 else f's_bfm_b64 exec, {n}, 0')
            g.vmop(f'buffer_load_dword v{t + 1}, v{t}, {srd(SSM)}, s{sT0} offen', 'touch', cond=True)
            e('s_mov_b64 exec, -1')
            e(f's_branch {lt}')
            g.lab(nx)
        e(f's_cmp_lg_u32 s{sW}, 5')
        e(f's_cbranch_scc1 {lt}')
        e(f's_getpc_b64 s[{sT2}:{sT3}]')
        e(f's_lshr_b32 s{sT0}, s2, 3')
        e(f's_lshl_b32 s{sT0}, s{sT0}, 10')
        e(f'v_add_u32 v{t}, s{sT0}, v{t}')
        e('s_mov_b64 exec, 0xff')
        g.vmop(f'global_load_dword v{t + 1}, v{t}, s[{sT2}:{sT3}]', 'touch', cond=True)
        e('s_mov_b64 exec, -1')
        g.lab(lt)

    def dma_x(stage, slot0):
        e(f's_add_u32 m0, s{sW2K}, {slot0 * SLOT}')
        e(f's_add_u32 s{sT0}, s{sXO}, {stage * 128}')
        g.vmop(f'buffer_load_dwordx4 v{vXA0}, {srd(SX)}, s{sT0} offen lds', f'st{stage}')
        g.vmop(f'buffer_load_dwordx4 v{vXA1}, {srd(SX)}, s{sT0} offen offset:1024 lds', f'st{stage}')

    def dma_w1(tag, stage, pitch, coloff, slot, va):
        e(f's_add_u32 m0, s{sW1K}, {slot * SLOT}')
        e(f's_add_u32 s{sT0}, s{sWO_}, {stage * 64 * pitch + coloff}')
        g.vmop(f'buffer_load_dwordx4 v{va}, {srd(SW1)}, s{sT0} offen lds', tag)

    def w2slot(st):
        return st if st < 19 else st - 19

    def dma_w2(st):
        e(f's_add_u32 m0, s{sW1K}, {w2slot(st) * SLOT}')
        if st < 22:
            e(f's_add_u32 s{sT0}, s{sW2O}, {st * 65536}')
            g.vmop(f'buffer_load_dwordx4 v{vW2A}, {srd(SW2)}, s{sT0} offen lds', f'w2_{st}')
        else:
            e(f's_add_u32 s{sT0}, s{sW2O}, {(st - 22) * 65536}')
            g.vmop(f'buffer_load_dwordx4 v{vW2A}, {srd(SWO)}, s{sT0} offen lds', f'w2_{st}')

    def g_loads():
        e(f's_lshl_b32 s{sT1}, s{sCGI}, 13')
        e(f's_add_u32 s{sT1}, s{sT1}, s{sXO}')
        e(f's_add_u32 s{sT1}, s{sT1}, s{sW1K}')
        g.vmop(f'buffer_load_dwordx4 {vr(vG, 4)}, v{vL16}, {srd(SX)}, s{sT1} offen', 'g')
        g.vmop(f'global_load_dwordx4 {vr(vG + 4, 4)}, v{vL16}, s[22:23]', 'g')

    def g_compute():
        a, b, acc = vTmp, vTmp + 1, vTmp + 2
        for i in range(4):
            e(f'v_lshlrev_b32 v{a}, 16, v{vG + i}')
            e(f'v_lshlrev_b32 v{b}, 16, v{vG + 4 + i}')
            if i == 0:
                e(f'v_mul_f32 v{acc}, v{a}, v{b}')
            else:
                e(f'v_fmac_f32 v{acc}, v{a}, v{b}')
            e(f'v_and_b32 v{a}, 0xffff0000, v{vG + i}')
            e(f'v_and_b32 v{b}, 0xffff0000, v{vG + 4 + i}')
            e(f'v_fmac_f32 v{acc}, v{a}, v{b}')
        for r in (1, 2, 4, 8):
            g.nop(2)
            e(f'v_add_f32_dpp v{acc}, v{acc}, v{acc} row_ror:{r} row_mask:0xf bank_mask:0xf')
        g.nop(1)
        e(f'v_readlane_b32 s{sT0}, v{acc}, 16')
        e(f'v_readlane_b32 s{sT1}, v{acc}, 32')
        e(f'v_readlane_b32 s{sT2}, v{acc}, 48')
        g.nop(1)
        e(f'v_add_f32 v{acc}, s{sT0}, v{acc}')
        e(f'v_add_f32 v{acc}, s{sT1}, v{acc}')
        e(f'v_add_f32 v{acc}, s{sT2}, v{acc}')
        e(f'v_mul_f32 v{acc}, {hex(LOG2E | 0x80000000)}, v{acc}')
        e(f'v_exp_f32 v{acc}, v{acc}')
        g.nop(1)
        e(f'v_add_f32 v{acc}, 1.0, v{acc}')
        e(f'v_rcp_f32 v{acc}, v{acc}')
        e(f's_lshl_b32 s{sT0}, s{sTG}, 9')
        e(f's_lshl_b32 s{sT1}, s{sCGI}, 5')
        e(f's_add_u32 s{sT0}, s{sT0}, s{sT1}')
        e(f's_lshl_b32 s{sT1}, s{sW}, 2')
        e(f's_add_u32 s{sT0}, s{sT0}, s{sT1}')
        e(f's_add_u32 s{sT0}, s{sT0}, {WS_G}')
        e('s_mov_b64 exec, 1')
        g.vmop(f'buffer_store_dword v{acc}, v{vL16}, {srd(SWS)}, s{sT0} offen sc1', 'gst')
        e('s_mov_b64 exec, -1')

    def lane_consts():
        a, b, d = vTmp, vTmp + 1, vTmp + 2
        e(f'v_and_b32 v{a}, 31, v{vL}')
        e(f'v_bfe_u32 v{b}, v{vL}, 1, 3')
        e(f'v_lshrrev_b32 v{d}, 5, v{vL}')
        e(f'v_lshlrev_b32 v{d}, 1, v{d}')
        e(f'v_xor_b32 v{b}, v{b}, v{d}')
        e(f'v_lshlrev_b32 v{b}, 4, v{b}')
        e(f'v_lshl_add_u32 v{b}, v{a}, 7, v{b}')
        e(f's_and_b32 s{sT0}, s{sW}, 3')
        e(f's_lshl_b32 s{sT0}, s{sT0}, 12')
        e(f'v_add_u32 v{vXR}, s{sT0}, v{b}')
        e(f'v_xor_b32 v{vXR + 1}, 16, v{vXR}')
        e(f'v_xor_b32 v{vXR + 2}, 64, v{vXR}')
        e(f'v_xor_b32 v{vXR + 3}, 0x50, v{vXR}')
        e(f'v_and_b32 v{a}, 1, v{vL}')
        e(f'v_lshlrev_b32 v{a}, 5, v{a}')
        e(f'v_bfe_u32 v{b}, v{vL}, 4, 1')
        e(f'v_lshl_add_u32 v{a}, v{b}, 4, v{a}')
        e(f'v_bfe_u32 v{b}, v{vL}, 1, 1')
        e(f'v_lshl_add_u32 v{a}, v{b}, 3, v{a}')
        e(f'v_bfe_u32 v{b}, v{vL}, 3, 1')
        e(f'v_lshl_add_u32 v{a}, v{b}, 6, v{a}')
        e(f'v_bfe_u32 v{b}, v{vL}, 2, 2')
        e(f'v_lshl_add_u32 v{a}, v{b}, 7, v{a}')
        e(f'v_lshrrev_b32 v{b}, 5, v{vL}')
        e(f'v_lshl_add_u32 v{vT + 3}, v{b}, 11, v{a}')
        e(f's_lshr_b32 s{sT0}, s{sW}, 2')
        e(f's_lshl_b32 s{sT0}, s{sT0}, 6')
        e(f'v_xor_b32 v{vT}, s{sT0}, v{vT + 3}')
        e(f'v_add_u32 v{vT + 1}, 0x10000, v{vT}')
        e(f'v_add_u32 v{vT + 2}, 0x20000, v{vT}')
        e(f'v_bfe_u32 v{a}, v{vL}, 2, 1')
        e(f'v_cmp_eq_u32 s[{sVAL}:{sVAL + 1}], v{a}, v{b}')
        e('s_waitcnt lgkmcnt(0)')
        e(f's_mul_i32 s{sTAG}, s{sTAG}, 1664525')
        e(f's_add_u32 s{sTAG}, s{sTAG}, 1013904223')
        e(f's_xor_b32 s{sTAG + 1}, s{sTAG}, 0x9e3779b9')

    def trd(dst, base, slot, ks, v):
        off = slot * SLOT + (32 * (ks >> 1) + 8 * (ks & 1) + 4 * v) * 128
        e(f'ds_read_b64_tr_b16 {vr(dst + 2 * v, 2)}, v{base + (off >> 16)} offset:{off & 0xffff}')

    def mfma(d, a, b, cc):
        e(f'v_mfma_f32_32x32x16_bf16 {vr(d, 16)}, {vr(a, 4)}, {vr(b, 4)}, {cc if isinstance(cc, str) else vr(cc, 16)}')

    def publish(off_code):
        l = g.newlab('pub')
        e(f's_cmp_lg_u32 s{sW}, 0')
        e(f's_cbranch_scc1 {l}')
        off_code()
        e(f'v_mov_b32 v{vTmp}, s{sTAG}')
        e(f'v_mov_b32 v{vTmp + 1}, s{sTAG + 1}')
        e('s_mov_b64 exec, 1')
        g.vmop(f'buffer_store_dwordx2 {vr(vTmp, 2)}, v{vL16}, {srd(SWS)}, s{sT1} offen sc1', 'flag', cond=True)
        e('s_mov_b64 exec, -1')
        g.lab(l)

    def p1flag_off():
        e(f's_lshl_b32 s{sT1}, s{sTG}, 4')
        e(f's_add_u32 s{sT1}, s{sT1}, s{sCGI}')
        e(f's_lshl_b32 s{sT1}, s{sT1}, 7')
        e(f's_add_u32 s{sT1}, s{sT1}, {WS_FP1}')

    def poll(voff, mask, nl=16):
        l, x = g.newlab('poll'), g.newlab('pollx')
        e(f's_mov_b32 s{sCNT}, 0')
        e(f's_mov_b64 exec, {hex(mask)}' if mask != -1 else 's_mov_b64 exec, -1')
        g.lab(l)
        e(f'buffer_load_dwordx2 {vr(vTmp, 2)}, v{voff}, {srd(SWS)}, s{sT1} offen sc1')
        e(f's_add_u32 s{sCNT}, s{sCNT}, 1')
        e(f's_cmp_gt_u32 s{sCNT}, 0x40000')
        e(f's_cbranch_scc1 {x}')
        e('s_waitcnt vmcnt(0)')
        e(f'v_cmp_ne_u64 vcc, s[{sTAG}:{sTAG + 1}], {vr(vTmp, 2)}')
        e(f's_cbranch_vccnz {l}')
        g.lab(x)
        e('s_waitcnt vmcnt(0)')
        e('s_mov_b64 exec, -1')
        g.vm = []

    def softmax(P, E, PP, PN, t):
        mx, mn, s1, s2 = t, t + 1, t + 2, t + 3
        e(f'v_max3_f32 v{mx}, v{P}, v{P + 1}, v{P + 2}')
        e(f'v_min3_f32 v{mn}, v{P}, v{P + 1}, v{P + 2}')
        for i in range(3, 15, 2):
            e(f'v_max3_f32 v{mx}, v{mx}, v{P + i}, v{P + i + 1}')
            e(f'v_min3_f32 v{mn}, v{mn}, v{P + i}, v{P + i + 1}')
        e(f'v_max_f32 v{mx}, v{mx}, v{P + 15}')
        e(f'v_min_f32 v{mn}, v{mn}, v{P + 15}')
        e(f'v_mul_f32 v{mx}, s{sC}, v{mx}')
        e(f'v_mul_f32 v{mn}, s{sC}, v{mn}')
        for i in range(16):
            e(f'v_fma_f32 v{E + i}, v{P + i}, s{sC}, -v{mx}')
            e(f'v_fma_f32 v{P + i}, -v{P + i}, s{sC}, v{mn}')
        for i in range(16):
            e(f'v_exp_f32 v{E + i}, v{E + i}')
            e(f'v_exp_f32 v{P + i}, v{P + i}')
        e(f'v_add_f32 v{s1}, v{E}, v{E + 1}')
        e(f'v_add_f32 v{s2}, v{P}, v{P + 1}')
        for i in range(2, 16):
            e(f'v_add_f32 v{s1}, v{s1}, v{E + i}')
            e(f'v_add_f32 v{s2}, v{s2}, v{P + i}')
        e(f'v_rcp_f32 v{s1}, v{s1}')
        e(f'v_rcp_f32 v{s2}, v{s2}')
        g.nop(1)
        for i in range(16):
            e(f'v_mul_f32 v{E + i}, v{s1}, v{E + i}')
            e(f'v_mul_f32 v{P + i}, v{s2}, v{P + i}')
        for i in range(8):
            e(f'v_cvt_pk_bf16_f32 v{PP + i}, v{E + 2 * i}, v{E + 2 * i + 1}')
            e(f'v_cvt_pk_bf16_f32 v{PN + i}, v{P + 2 * i}, v{P + 2 * i + 1}')

    def pack16(dst, src):
        for i in range(8):
            e(f'v_cvt_pk_bf16_f32 v{dst + i}, v{src + 2 * i}, v{src + 2 * i + 1}')

    vWR = 128

    def p2_bases():
        kg = sT0
        e(f's_and_b32 s{kg}, s{sW}, 3')
        e(f's_lshr_b32 s{sT1}, s{kg}, 1')
        e(f's_lshl_b32 s{sT1}, s{sT1}, 12')
        e(f's_and_b32 s{kg}, s{kg}, 1')
        e(f's_lshl_b32 s{kg}, s{kg}, 10')
        e(f's_add_u32 s{kg}, s{kg}, s{sT1}')
        e(f'v_add_u32 v{vT}, s{kg}, v{vT + 3}')
        e(f'v_add_u32 v{vT + 1}, 0x10000, v{vT}')
        e(f'v_add_u32 v{vT + 2}, 0x20000, v{vT}')
        e(f'v_xor_b32 v{vT + 3}, 64, v{vT}')
        e(f'v_add_u32 v{vT + 4}, 0x10000, v{vT + 3}')
        e(f'v_add_u32 v{vT + 5}, 0x20000, v{vT + 3}')

    def p2_wread(dst, st):
        for nb in range(2):
            for v in range(2):
                trd(dst + 4 * nb, vT + 3 * nb, w2slot(st), 0, v)

    def w2_move():
        for st in range(11):
            p2_wread(vWR + 8 * st, st)
            if st % 3 == 2:
                e('s_waitcnt lgkmcnt(0)')
        e('s_waitcnt lgkmcnt(0)')
        e('s_barrier')

    e(f's_bitcmp1_b32 s{sCGI}, 1')
    e('s_cbranch_scc1 L_ffn')
    vm_common = list(g.vm)

    c('================ QKV workgroup')
    vX = 128
    vAK, vAV = 32, 48
    vF = 64
    vSEL, vAPHI = 80, 88
    mksrd(SW1, 6, 512 * 3072)
    e(f's_mov_b32 s{sT0}, 3072')
    e(f'v_mad_u32_u24 v{vWA}, v{vTmp}, s{sT0}, v{vWA2}')
    e(f's_lshl_b32 s{sWO_}, s{sGRP}, 7')
    l = g.newlab('wphi')
    e(f's_cmp_gt_u32 s{sW}, 1')
    e(f's_cbranch_scc1 {l}')
    mksrd(SSM, 8, 32 * 512)
    e(f's_add_u32 m0, s{sW1K}, {L_WPHI}')
    e(f's_lshl_b32 s{sT0}, s{sGRP}, 11')
    e(f's_add_u32 s{sT0}, s{sT0}, s{sW1K}')
    g.vmop(f'buffer_load_dwordx4 v{vL16}, {srd(SSM)}, s{sT0} offen lds', 'st0', cond=True)
    g.lab(l)

    def q_stage_dma(s):
        dma_x(s, 2 * (s % 3))
        dma_w1(f'st{s}', s, 3072, 1024, 6 + 2 * (s % 3), vWA)
        dma_w1(f'st{s}', s, 3072, 2048, 7 + 2 * (s % 3), vWA)

    def qslot(s):
        return 12 + s if s < 7 else 11

    for s in range(3):
        q_stage_dma(s)
    g_loads()
    lane_consts()
    a, b, d = vTmp, vTmp + 1, vTmp + 2
    e(f'v_bfe_u32 v{a}, v{vL}, 3, 2')
    e(f'v_lshlrev_b32 v{a}, 1, v{a}')
    e(f'v_bfe_u32 v{b}, v{vL}, 1, 1')
    e(f'v_add_u32 v{a}, v{a}, v{b}')
    e(f'v_and_b32 v{b}, 1, v{vL}')
    e(f'v_lshlrev_b32 v{b}, 4, v{b}')
    e(f'v_mov_b32 v{d}, 0x3f80')
    e(f'v_lshlrev_b32 v{d}, v{b}, v{d}')
    e(f'v_cndmask_b32 v{d}, 0, v{d}, s[{sVAL}:{sVAL + 1}]')
    for q in range(8):
        e(f'v_cmp_eq_u32 vcc, {q}, v{a}')
        g.nop(2)
        e(f'v_cndmask_b32 v{vSEL + q}, 0, v{d}, vcc')
    e(f'v_mov_b32 v{a}, 0')
    e(f'v_and_b32 v{b}, 15, v{vL}')
    e(f'v_lshlrev_b32 v{b}, 2, v{b}')
    e(f'v_add_u32 v{b}, {L_ZERO}, v{b}')
    e(f'ds_write_b32 v{b}, v{a}')
    g.stamp(1)

    def q_reads(n):
        s, ks = n >> 2, n & 3
        e(f'ds_read_b128 {vr(vX + 4 * n, 4)}, v{vXR + ks} offset:{2 * (s % 3) * SLOT}')
        buf = vF + 8 * (n & 1)
        for j in range(2):
            for v in range(2):
                trd(buf + 4 * j, vT, 6 + 2 * (s % 3) + j, ks, v)

    g.vmwait('st0', 'lgkmcnt(0)')
    e('s_barrier')
    g.stamp(2)
    q_reads(0)
    qd = 0
    for n in range(32):
        s, ks = n >> 2, n & 3
        if n < 31:
            if ks == 3:
                g.vmwait(f'st{s + 1}', 'lgkmcnt(0)')
                e('s_barrier')
                if s + 3 < 8:
                    q_stage_dma(s + 3)
                else:
                    for _ in range(4):
                        dma_w1('q', qd, 3072, 0, qslot(qd), vWA)
                        qd += 1
                q_reads(n + 1)
            else:
                q_reads(n + 1)
                e('s_waitcnt lgkmcnt(5)')
        else:
            e('s_waitcnt lgkmcnt(0)')
        buf = vF + 8 * (n & 1)
        mfma(vAK, buf, vX + 4 * n, '0' if n == 0 else vAK)
        mfma(vAV, vX + 4 * n, buf + 4, '0' if n == 0 else vAV)
    assert qd == 8
    e('s_barrier')
    g.stamp(3)
    for st in range(7):
        dma_w2(st)
    a, b = vTmp, vTmp + 1
    e(f'v_bfe_u32 v{a}, v{vL}, 2, 2')
    e(f'v_lshlrev_b32 v{a}, 5, v{a}')
    e(f'v_bfe_u32 v{b}, v{vL}, 4, 1')
    e(f'v_lshl_add_u32 v{a}, v{b}, 4, v{a}')
    e(f'v_bfe_u32 v{b}, v{vL}, 1, 1')
    e(f'v_lshl_add_u32 v{a}, v{b}, 3, v{a}')
    e(f'v_lshrrev_b32 v{b}, 5, v{vL}')
    e(f'v_lshl_add_u32 v{a}, v{b}, 9, v{a}')
    e(f's_lshr_b32 s{sT0}, s{sW}, 2')
    e(f's_lshl_b32 s{sT0}, s{sT0}, 10')
    e(f's_add_u32 s{sT0}, s{sT0}, {L_WPHI}')
    e(f'v_add_u32 v{a}, s{sT0}, v{a}')
    for u in range(2):
        for v in range(2):
            e(f'ds_read_b64_tr_b16 {vr(vAPHI + 4 * u + 2 * v, 2)}, v{a} offset:{(8 * u + 4 * v) * 32}')
    vKB = 64
    vVB = 72
    pack16(vKB, vAK)
    pack16(vVB, vAV)
    e('s_waitcnt lgkmcnt(0)')
    for i in range(8):
        e(f'v_cndmask_b32 v{vAPHI + i}, 0, v{vAPHI + i}, s[{sVAL}:{sVAL + 1}]')
    g.nop(2)
    mfma(vAK, vAPHI, vKB, '0')
    mfma(vAK, vAPHI + 4, vKB + 4, vAK)
    g_compute()
    vE, vPP, vPN = 96, 112, 120
    softmax(vAK, vE, vPP, vPN, vTmp)
    g.nop(2)
    mfma(vAK, vPP, vSEL, '0')
    mfma(vAV, vPN, vSEL, '0')
    mfma(vAK, vPP + 4, vSEL + 4, vAK)
    mfma(vAV, vPN + 4, vSEL + 4, vAV)
    vONE = 64
    for i in range(4):
        e(f'v_mov_b32 v{vONE + i}, 0x3f803f80')
    a, b, d = vTmp, vTmp + 1, vTmp + 2
    e(f'v_bfe_u32 v{a}, v{vL}, 3, 2')
    e(f'v_lshlrev_b32 v{a}, 2, v{a}')
    e(f'v_and_b32 v{b}, 3, v{vL}')
    e(f'v_add_u32 v{a}, v{a}, v{b}')
    e(f'v_lshrrev_b32 v{d}, 5, v{vL}')
    e(f'v_lshl_add_u32 v{a}, v{d}, 4, v{a}')
    e(f'v_lshlrev_b32 v{a}, 7, v{a}')
    e(f'v_lshl_add_u32 v{a}, v{b}, 4, v{a}')
    e(f's_lshl_b32 s{sT0}, s{sW}, 12')
    e(f's_add_u32 s{sT0}, s{sT0}, {7 * SLOT}')
    e(f'v_add_u32 v{a}, s{sT0}, v{a}')
    e(f's_lshl_b32 s{sT0}, s{sW}, 8')
    e(f's_add_u32 s{sT0}, s{sT0}, {L_TAB}')
    e(f'v_lshlrev_b32 v{d}, 7, v{d}')
    e(f'v_add_u32 v{d}, s{sT0}, v{d}')
    vSA = 68
    for j in range(4):
        e(f'v_xor_b32 v{vSA + j}, {16 * j}, v{a}')
    pack16(vPP, vAK)
    pack16(vPN, vAV)
    g.nop(2)
    mfma(vAK, vPP, vVB, '0')
    mfma(vAV, vPN, vVB, '0')
    mfma(vE, vPP, vONE, '0')
    mfma(vAK, vPP + 4, vVB + 4, vAK)
    mfma(vAV, vPN + 4, vVB + 4, vAV)
    mfma(vE, vPP + 4, vONE, vE)
    g.nop(12)
    e(f's_mov_b64 exec, s[{sVAL}:{sVAL + 1}]')
    for j in range(4):
        e(f'ds_write_b128 v{vSA + j}, {vr(vAK + 4 * j, 4)}')
    for j in range(4):
        e(f'ds_write_b128 v{vSA + j}, {vr(vAV + 4 * j, 4)} offset:64')
    e('s_mov_b64 exec, -1')
    e('s_waitcnt lgkmcnt(0)')
    mfma(vAK, vPN, vONE, '0')
    mfma(vAK, vPN + 4, vONE, vAK)
    e('s_mov_b32 exec_lo, 1')
    e('s_mov_b32 exec_hi, 1')
    for j in range(4):
        e(f'ds_write_b128 v{d}, {vr(vE + 4 * j, 4)} offset:{16 * j}')
    g.nop(8)
    for j in range(4):
        e(f'ds_write_b128 v{d}, {vr(vAK + 4 * j, 4)} offset:{64 + 16 * j}')
    e('s_mov_b64 exec, -1')
    g.vmwait('q', 'lgkmcnt(0)')
    e('s_barrier')
    g.stamp(4)
    lr, lz, lj = g.newlab('red'), g.newlab('redz'), g.newlab('redj')
    a, b, d = vTmp, vTmp + 1, vTmp + 2
    e(f's_cmp_gt_u32 s{sW}, 4')
    e(f's_cbranch_scc1 {lr}')
    e(f's_cmp_eq_u32 s{sW}, 4')
    e(f's_cbranch_scc1 {lz}')
    e(f'v_lshrrev_b32 v{a}, 2, v{vL}')
    e(f'v_and_b32 v{b}, 3, v{vL}')
    e(f'v_lshlrev_b32 v{b}, 1, v{b}')
    e(f'v_and_b32 v{d}, 3, v{a}')
    e(f'v_xor_b32 v{b}, v{b}, v{d}')
    e(f'v_lshlrev_b32 v{b}, 4, v{b}')
    e(f'v_lshl_add_u32 v{a}, v{a}, 7, v{b}')
    e(f's_lshr_b32 s{sT0}, s{sW}, 1')
    e(f's_lshl_b32 s{sT0}, s{sT0}, 14')
    e(f's_and_b32 s{sT1}, s{sW}, 1')
    e(f's_lshl_b32 s{sT1}, s{sT1}, 11')
    e(f's_add_u32 s{sT0}, s{sT0}, s{sT1}')
    e(f's_add_u32 s{sT0}, s{sT0}, {7 * SLOT}')
    e(f'v_add_u32 v{a}, s{sT0}, v{a}')
    e(f'v_xor_b32 v{b}, 16, v{a}')
    for tb in range(4):
        e(f'ds_read_b128 {vr(vE + 8 * tb, 4)}, v{a} offset:{tb * 4096}')
        e(f'ds_read_b128 {vr(vE + 8 * tb + 4, 4)}, v{b} offset:{tb * 4096}')
    e(f's_branch {lj}')
    g.lab(lz)
    e(f'v_bfe_u32 v{a}, v{vL}, 3, 1')
    e(f'v_lshlrev_b32 v{a}, 10, v{a}')
    e(f'v_bfe_u32 v{b}, v{vL}, 2, 1')
    e(f'v_lshl_add_u32 v{a}, v{b}, 7, v{a}')
    e(f'v_and_b32 v{b}, 3, v{vL}')
    e(f'v_lshl_add_u32 v{a}, v{b}, 5, v{a}')
    e(f'v_add_u32 v{a}, {L_TAB}, v{a}')
    for tb in range(4):
        e(f'ds_read_b128 {vr(vE + 8 * tb, 4)}, v{a} offset:{tb * 256}')
        e(f'ds_read_b128 {vr(vE + 8 * tb + 4, 4)}, v{a} offset:{tb * 256 + 16}')
    e('s_mov_b64 exec, 0xffff')
    g.lab(lj)
    e(f's_lshl_b32 s{sT0}, s{sGRP}, 4')
    e(f's_add_u32 s{sT0}, s{sT0}, s{sTG}')
    e(f's_mul_i32 s{sT0}, s{sT0}, {KVP_SZ}')
    e(f's_add_u32 s{sT0}, s{sT0}, s{sW1K}')
    e(f's_add_u32 s{sT0}, s{sT0}, {WS_KVP}')
    e('s_waitcnt lgkmcnt(0)')
    for i in range(8):
        e(f'v_add_f32 v{vE + i}, v{vE + i}, v{vE + 8 + i}')
        e(f'v_add_f32 v{vE + 16 + i}, v{vE + 16 + i}, v{vE + 24 + i}')
    for i in range(8):
        e(f'v_add_f32 v{vE + i}, v{vE + i}, v{vE + 16 + i}')
    for i in range(4):
        e(f'v_cvt_pk_bf16_f32 v{vE + 8 + i}, v{vE + 2 * i}, v{vE + 2 * i + 1}')
    g.vmop(f'buffer_store_dwordx4 {vr(vE + 8, 4)}, v{vL16}, {srd(SWS)}, s{sT0} offen sc1', 'kvst', cond=True)
    e('s_mov_b64 exec, -1')
    g.lab(lr)

    def qq_reads(n):
        for v in range(2):
            trd(vF + 4 * (n % 4), vT, qslot(n >> 2), n & 3, v)

    for n in range(3):
        qq_reads(n)
    KVPUB = opt.get('kvpub', 12)
    for n in range(32):
        if n == KVPUB:
            g.vmwait(['kvst', 'gst'])
            e('s_barrier')

            def off():
                e(f's_lshl_b32 s{sT1}, s{sGRP}, 4')
                e(f's_add_u32 s{sT1}, s{sT1}, s{sTG}')
                e(f's_lshl_b32 s{sT1}, s{sT1}, 7')
                e(f's_add_u32 s{sT1}, s{sT1}, {WS_FKV}')
            publish(off)
            for st in range(7, 11):
                dma_w2(st)
        if n + 3 < 32:
            qq_reads(n + 3)
            e('s_waitcnt lgkmcnt(6)')
        else:
            e(f's_waitcnt lgkmcnt({2 * (31 - n)})')
        mfma(vAK, vF + 4 * (n % 4), vX + 4 * n, '0' if n == 0 else vAK)
    g.vmwait('w2_10')
    e('s_barrier')
    g.stamp(5)
    for st in range(11, 19):
        dma_w2(st)
    p2_bases()
    pack16(vKB, vAK)
    g.nop(2)
    mfma(vAK, vAPHI, vKB, '0')
    mfma(vAK, vAPHI + 4, vKB + 4, vAK)
    w2_move()
    softmax(vAK, vE, vPP, vPN, vTmp)
    g.stamp(6)
    lg = g.newlab('gat')
    vGA = 32
    vS = 96
    e(f's_cmp_gt_u32 s{sW}, 4')
    e(f's_cbranch_scc1 {lg}')
    e(f'v_lshlrev_b32 v{vTmp + 2}, 7, v{vL}')
    e(f's_lshl_b32 s{sT1}, s{sGRP}, 11')
    e(f's_add_u32 s{sT1}, s{sT1}, {WS_FKV}')
    vm_save = list(g.vm)
    poll(vTmp + 2, 0xffff)
    g.stamp(7)
    e(f's_mul_i32 s{sT0}, s{sGRP}, {16 * KVP_SZ}')
    e(f's_add_u32 s{sT0}, s{sT0}, s{sW1K}')
    e(f's_add_u32 s{sT0}, s{sT0}, {WS_KVP}')
    e(f's_cmp_eq_u32 s{sW}, 4')
    e(f's_cselect_b32 exec_lo, 0xffff, -1')
    e(f's_cselect_b32 exec_hi, 0, -1')
    for p in range(16):
        e(f'buffer_load_dwordx4 {vr(vGA + 4 * p, 4)}, v{vL16}, {srd(SWS)}, s{sT0} offen sc1')
        if p < 15:
            e(f's_add_u32 s{sT0}, s{sT0}, {KVP_SZ}')
    for p in range(16):
        e(f's_waitcnt vmcnt({15 - p})')
        for i in range(4):
            r = vGA + 4 * p + i
            if p == 0:
                e(f'v_lshlrev_b32 v{vS + 2 * i}, 16, v{r}')
                e(f'v_and_b32 v{vS + 2 * i + 1}, 0xffff0000, v{r}')
            else:
                e(f'v_lshlrev_b32 v{vTmp}, 16, v{r}')
                e(f'v_and_b32 v{r}, 0xffff0000, v{r}')
                e(f'v_add_f32 v{vS + 2 * i}, v{vS + 2 * i}, v{vTmp}')
                e(f'v_add_f32 v{vS + 2 * i + 1}, v{vS + 2 * i + 1}, v{r}')
    for i in range(4):
        e(f'v_cvt_pk_bf16_f32 v{vS + 8 + i}, v{vS + 2 * i}, v{vS + 2 * i + 1}')
    e(f's_add_u32 s{sT0}, s{sW1K}, {L_TAB}')
    e(f'v_add_u32 v{vTmp}, s{sT0}, v{vL16}')
    e(f'ds_write_b128 v{vTmp}, {vr(vS + 8, 4)}')
    e('s_mov_b64 exec, -1')
    g.lab(lg)
    g.vm = vm_save
    for st in range(19, 30):
        dma_w2(st)
    a, b, d = vTmp, vTmp + 1, vTmp + 2
    e(f'v_bfe_u32 v{a}, v{vL}, 3, 2')
    e(f'v_lshlrev_b32 v{a}, 2, v{a}')
    e(f'v_and_b32 v{b}, 3, v{vL}')
    e(f'v_add_u32 v{a}, v{a}, v{b}')
    e(f'v_lshrrev_b32 v{d}, 5, v{vL}')
    e(f's_lshr_b32 s{sT0}, s{sW}, 2')
    e(f's_lshl_b32 s{sT0}, s{sT0}, 1')
    e(f'v_add_u32 v{d}, s{sT0}, v{d}')
    e(f'v_lshl_add_u32 v{a}, v{d}, 4, v{a}')
    e(f'v_lshlrev_b32 v{a}, 6, v{a}')
    e(f'v_add_u32 v{a}, {L_TAB}, v{a}')
    e(f'v_lshlrev_b32 v{d}, 6, v{d}')
    e(f'v_add_u32 v{d}, {L_TAB + 4096}, v{d}')
    e(f'v_mov_b32 v{b}, {L_ZERO}')
    e(f'v_cndmask_b32 v{a}, v{b}, v{a}, s[{sVAL}:{sVAL + 1}]')
    e(f'v_cndmask_b32 v{d}, v{b}, v{d}, s[{sVAL}:{sVAL + 1}]')
    e(f's_lshl_b32 s{sT0}, s{sTG}, 2')
    e(f's_and_b32 s{sT1}, s{sW}, 3')
    e(f's_add_u32 s{sT0}, s{sT0}, s{sT1}')
    e(f's_mul_i32 s{sACT}, s{sT0}, {ACT_TB}')
    e(f's_lshl_b32 s{sT0}, s{sGRP}, 12')
    e(f's_add_u32 s{sACT}, s{sACT}, s{sT0}')
    e(f's_lshr_b32 s{sT0}, s{sW}, 2')
    e(f's_lshl_b32 s{sT0}, s{sT0}, 11')
    e(f's_add_u32 s{sACT}, s{sACT}, s{sT0}')
    e(f's_add_u32 s{sACT}, s{sACT}, {WS_ACT + 88 * 1024}')
    e('s_waitcnt lgkmcnt(0)')
    e('s_barrier')
    g.stamp(8)
    vKA, vZA, vNUM, vDEN = 32, 48, 64, 80
    for t in range(4):
        e(f'ds_read_b128 {vr(vZA + 4 * t, 4)}, v{d} offset:{16 * t}')
    for t in range(4):
        e(f'ds_read_b128 {vr(vKA + 4 * t, 4)}, v{a} offset:{16 * t}')
    for t in range(4):
        e(f's_waitcnt lgkmcnt({7 - t})')
        mfma(vDEN, vZA + 4 * t, vPP + 4 * t, '0' if t == 0 else vDEN)
    for t in range(4):
        e(f's_waitcnt lgkmcnt({3 - t})')
        mfma(vNUM, vKA + 4 * t, vPP + 4 * t, '0' if t == 0 else vNUM)
    g.nop(6)
    e(f'v_add_f32 v{vDEN}, {hex(f2u(1e-6))}, v{vDEN}')
    e(f'v_rcp_f32 v{vDEN}, v{vDEN}')
    g.nop(6)
    for i in range(16):
        e(f'v_mul_f32 v{vNUM + i}, v{vDEN}, v{vNUM + i}')
    pack16(vS, vNUM)
    g.vmop(f'buffer_store_dwordx4 {vr(vS, 4)}, v{vL16}, {srd(SWS)}, s{sACT} offen sc1', 'ost')
    g.vmop(f'buffer_store_dwordx4 {vr(vS + 4, 4)}, v{vL16}, {srd(SWS)}, s{sACT} offen offset:1024 sc1', 'ost')
    e('s_branch L_p2')

    g.lab('L_ffn')
    g.vm = list(vm_common)
    c('================ FFN workgroup')
    vA = 32
    vF = 80
    vB = 112
    mksrd(SW1, 14, 512 * 2752)
    mksrd(SSM, 16, 2752)
    e(f's_mov_b32 s{sT0}, 2752')
    e(f'v_mad_u32_u24 v{vWA}, v{vTmp}, s{sT0}, v{vWA2}')
    e(f's_mul_i32 s{sT0}, s{sGRP}, 43')
    e(f's_add_u32 s{sT1}, s{sT0}, 50')
    e(f's_add_u32 s{sT0}, s{sT0}, 7')
    e(f's_lshr_b32 s{sT0}, s{sT0}, 3')
    e(f's_lshr_b32 s{sT1}, s{sT1}, 3')
    e(f's_sub_u32 s{sT1}, s{sT1}, s{sT0}')
    e(f's_lshl_b32 s{sWO_}, s{sT0}, 6')
    e(f's_lshr_b32 s{sT2}, s{sW}, 2')
    e(f's_add_u32 s{sT0}, s{sT0}, s{sT2}')
    e(f's_lshl_b32 s{sACT}, s{sT0}, 11')
    e(f's_lshl_b32 s{sT3}, s{sT0}, 6')
    e(f's_lshl_b32 s{sT0}, s{sTG}, 2')
    e(f's_and_b32 s{sCNT}, s{sW}, 3')
    e(f's_add_u32 s{sT0}, s{sT0}, s{sCNT}')
    e(f's_mul_i32 s{sT0}, s{sT0}, {ACT_TB}')
    e(f's_add_u32 s{sACT}, s{sACT}, s{sT0}')
    e(f's_add_u32 s{sACT}, s{sACT}, {WS_ACT}')
    sLAST = 3
    e(f's_cmp_eq_u32 s{sT1}, 5')
    e(f's_cselect_b32 s{sT0}, {OOB}, 0')
    e(f's_mul_i32 s{sLAST}, s{sT0}, s{sT2}')
    e(f'v_cmp_lt_u32 vcc, 63, v{vWA2}')
    e(f'v_mov_b32 v{vTmp + 1}, s{sT0}')
    g.nop(1)
    e(f'v_cndmask_b32 v{vTmp + 1}, 0, v{vTmp + 1}, vcc')
    e(f'v_add_u32 v{vWA2}, v{vWA}, v{vTmp + 1}')
    a, b = vTmp + 1, vTmp + 2
    vBA = 19

    def colperm_addr(dst):
        e(f'v_bfe_u32 v{a}, v{vL}, 2, 1')
        e(f'v_lshlrev_b32 v{a}, 5, v{a}')
        e(f'v_bfe_u32 v{b}, v{vL}, 3, 2')
        e(f'v_lshl_add_u32 v{a}, v{b}, 3, v{a}')
        e(f'v_and_b32 v{b}, 3, v{vL}')
        e(f'v_lshl_add_u32 v{a}, v{b}, 1, v{a}')
        e(f'v_lshrrev_b32 v{b}, 5, v{vL}')
        e(f'v_lshl_add_u32 v{dst}, v{b}, 28, v{a}')
    colperm_addr(vBA)
    for i in range(3):
        g.vmop(f'buffer_load_ushort v{vB + 4 * i}, v{vBA}, {srd(SSM)}, s{sT3} offen offset:{128 * i}', 'bias')

    def f_stage_dma(s):
        dma_x(s, 2 * (s % 3))
        for j in range(3):
            dma_w1(f'st{s}', s, 2752, 128 * j, 6 + 3 * (s % 3) + j, vWA if j < 2 else vWA2)

    for s in range(3):
        f_stage_dma(s)
    g_loads()
    lane_consts()
    for i in range(3):
        for k in range(1, 4):
            e(f'v_mov_b32 v{vB + 4 * i + k}, 0')
    for k in range(4):
        e(f'v_mov_b32 v{vB + 12 + k}, 0x3f803f80')
    g.stamp(1)

    def f_reads(n):
        s, ks = n >> 2, n & 3
        buf = vF + 16 * (n & 1)
        e(f'ds_read_b128 {vr(buf, 4)}, v{vXR + ks} offset:{2 * (s % 3) * SLOT}')
        for j in range(3):
            for v in range(2):
                trd(buf + 4 + 4 * j, vT, 6 + 3 * (s % 3) + j, ks, v)

    g.vmwait('st0', 'lgkmcnt(0)')
    e('s_barrier')
    g.stamp(2)
    f_reads(0)
    for j in range(3):
        mfma(vA + 16 * j, vB + 4 * j, vB + 12, '0')
    after = {5: [15, 16, 17, 18, 4], 6: [5, 12, 13, 14, 0]}
    rest = [1, 6, 7, 8, 2, 3, 9, 10, 11]
    for n in range(32):
        s, ks = n >> 2, n & 3
        if n < 31:
            if ks == 3:
                g.vmwait(f'st{s + 1}', 'lgkmcnt(0)')
                e('s_barrier')
                if s + 3 < 8:
                    f_stage_dma(s + 3)
                else:
                    for st in after[s]:
                        dma_w2(st)
                f_reads(n + 1)
            else:
                f_reads(n + 1)
                e('s_waitcnt lgkmcnt(7)')
        else:
            e('s_waitcnt lgkmcnt(0)')
        buf = vF + 16 * (n & 1)
        for j in range(3):
            mfma(vA + 16 * j, buf + 4 + 4 * j, buf, vA + 16 * j)
    e('s_barrier')
    g.stamp(3)
    p2_bases()
    g_compute()
    K0 = -2.0 * 0.7978845608028654 * 1.4426950408889634
    K1 = K0 * 0.044715
    e(f's_mov_b32 s{sT2}, {hex(f2u(K1))}')
    e(f'v_mov_b32 v{vBA}, {hex(f2u(K0))}')
    vE = 80

    def gelu(j, dmas):
        A = vA + 16 * j
        dm = list(dmas)

        def tick():
            if dm:
                dma_w2(dm.pop(0))
        for i in range(16):
            e(f'v_mul_f32 v{vE + i}, v{A + i}, v{A + i}')
        tick()
        for i in range(16):
            e(f'v_fma_f32 v{vE + i}, v{vE + i}, s{sT2}, v{vBA}')
        for i in range(16):
            e(f'v_mul_f32 v{vE + i}, v{vE + i}, v{A + i}')
        tick()
        for i in range(16):
            e(f'v_exp_f32 v{vE + i}, v{vE + i}')
        tick()
        for i in range(16):
            e(f'v_add_f32 v{vE + i}, 1.0, v{vE + i}')
        tick()
        for i in range(16):
            e(f'v_rcp_f32 v{vE + i}, v{vE + i}')
        tick()
        for i in range(16):
            e(f'v_mul_f32 v{vE + i}, v{vE + i}, v{A + i}')
        while dm:
            tick()
        pack16(A, vE)
        e(f's_add_u32 s{sT0}, s{sACT}, {4096 * j}')
        if j == 2:
            e(f's_add_u32 s{sT0}, s{sT0}, s{sLAST}')
        g.vmop(f'buffer_store_dwordx4 {vr(A, 4)}, v{vL16}, {srd(SWS)}, s{sT0} offen sc1', 'ost')
        g.vmop(f'buffer_store_dwordx4 {vr(A + 4, 4)}, v{vL16}, {srd(SWS)}, s{sT0} offen offset:1024 sc1', 'ost')

    gelu(0, rest[:5])
    gelu(1, rest[5:])
    gelu(2, [])
    g.stamp(4)
    g.vmwait('w2_10')
    e('s_barrier')
    w2_move()
    g.stamp(5)
    g.vmwait(['ost', 'gst'])
    e('s_barrier')
    publish(p1flag_off)
    for st in range(19, 30):
        dma_w2(st)
    g.stamp(6)
    e('s_branch L_p2b')

    g.lab('L_p2')
    c('QKV workgroups publish o')
    g.vmall()
    e('s_barrier')
    publish(p1flag_off)
    g.lab('L_p2b')
    g.vm = []
    c('================ phase 2')
    g.stamp(9)
    vAB, vAA = 32, 64
    vH = 216
    NH = 10
    vWL = 96
    vB2 = 112
    vHA = 18
    vGV = 19
    a, b = vTmp + 1, vTmp + 2
    mksrd(SSM, 20, 1024)
    colperm_addr(vGV)
    e(f's_and_b32 s{sT2}, s{sW}, 3')
    e(f's_cmp_eq_u32 s{sT2}, 0')
    e(f's_cselect_b32 s{sT0}, 0, {OOB}')
    e(f's_add_u32 s{sT0}, s{sT0}, s{sW2O}')
    for i in range(2):
        e(f'buffer_load_ushort v{vB2 + 4 * i}, v{vGV}, {srd(SSM)}, s{sT0} offen offset:{64 * i}')
        for k in range(1, 4):
            e(f'v_mov_b32 v{vB2 + 4 * i + k}, 0')
    for k in range(4):
        e(f'v_mov_b32 v{vB2 + 8 + k}, 0x3f803f80')
    e(f's_lshl_b32 s{sT0}, s{sTT}, 1')
    e(f's_lshr_b32 s{sT1}, s{sW}, 2')
    e(f's_add_u32 s{sT0}, s{sT0}, s{sT1}')
    e(f's_lshl_b32 s{sACT}, s{sT0}, 7')
    e(f's_add_u32 s{sACT}, s{sACT}, {WS_G}')
    e(f's_mul_i32 s{sT0}, s{sT0}, {ACT_TB}')
    e(f's_lshl_b32 s{sT1}, s{sT2}, 10')
    e(f's_add_u32 s{sT0}, s{sT0}, s{sT1}')
    e(f'v_add_u32 v{vHA}, s{sT0}, v{vL16}')
    e(f's_cmp_ge_u32 s{sT2}, 2')
    e(f's_cselect_b32 s3, {OOB}, 0')
    e(f's_add_u32 s3, s3, {WS_ACT + 21 * 4096}')
    vFO = 20
    e(f'v_lshlrev_b32 v{vFO}, 7, v{vL}')

    def fl_off():
        e(f's_lshr_b32 s{sT1}, s{sTT}, 1')
        e(f's_lshl_b32 s{sT1}, s{sT1}, 11')
        e(f's_add_u32 s{sT1}, s{sT1}, {WS_FP1}')
    fl_off()
    poll(vFO, 0xcccc)
    g.stamp(10)

    def hload(st):
        r = vH + 4 * (st % NH)
        if st == 21:
            g.vmop(f'buffer_load_dwordx4 {vr(r, 4)}, v{vHA}, {srd(SWS)}, s3 offen sc1', f'h{st}')
        else:
            e(f's_mov_b32 s{sT0}, {WS_ACT + st * 4096}')
            g.vmop(f'buffer_load_dwordx4 {vr(r, 4)}, v{vHA}, {srd(SWS)}, s{sT0} offen sc1', f'h{st}')

    for st in range(NH):
        hload(st)
    e('s_barrier')
    for nb in range(2):
        mfma(vAB + 16 * nb, vB2 + 4 * nb, vB2 + 8, '0')
    nxt = NH
    for st in range(30):
        if st == 22:
            g.stamp(11)
            fl_off()
            poll(vFO, 0x3333)
            g.stamp(12)
            for k in range(22, 30):
                hload(k)
            e(f'v_and_b32 v{vTmp}, 31, v{vL}')
            e(f'v_lshlrev_b32 v{vTmp}, 2, v{vTmp}')
            g.vmop(f'buffer_load_dword v{vGV}, v{vTmp}, {srd(SWS)}, s{sACT} offen sc1', 'gv')
        if 11 <= st + 1 < 30:
            p2_wread(vWL + 8 * ((st + 1) & 1), st + 1)
        lg_ = ''
        if st >= 11:
            lg_ = 'lgkmcnt(4)' if st + 1 < 30 else 'lgkmcnt(0)'
        g.vmwait(f'h{st}', lg_)
        w = vWR + 8 * st if st < 11 else vWL + 8 * (st & 1)
        acc = vAB if st < 22 else vAA
        for nb in range(2):
            mfma(acc + 16 * nb, w + 4 * nb, vH + 4 * (st % NH), '0' if st == 22 else acc + 16 * nb)
        if nxt < 22:
            hload(nxt)
            nxt += 1
    g.stamp(13)
    lE = g.newlab('ep')
    e(f's_cmp_lg_u32 s2, 255')
    e(f's_cbranch_scc1 {lE}')
    e(f's_cmp_lg_u32 s{sW}, 7')
    e(f's_cbranch_scc1 {lE}')
    vm_save = list(g.vm)
    for k in range(4):
        e(f's_mov_b32 s{sT1}, {WS_FP1 + k * 8192}')
        poll(vFO, -1)
    e(f'v_mov_b32 v{vTmp}, s{sTAG}')
    e('s_mov_b64 exec, 1')
    e(f'buffer_store_dword v{vTmp}, v{vL16}, {srd(SWS)}, 0 offen sc1')
    e('s_mov_b64 exec, -1')
    g.lab(lE)
    g.vm = vm_save
    a, b, d = vTmp, vTmp + 1, vTmp + 2
    e(f'v_and_b32 v{a}, 31, v{vL}')
    e(f'v_and_b32 v{b}, 15, v{vL}')
    e(f'v_lshrrev_b32 v{d}, 5, v{vL}')
    e(f'v_lshlrev_b32 v{d}, 2, v{d}')
    e(f'v_xor_b32 v{b}, v{b}, v{d}')
    e(f'v_lshlrev_b32 v{b}, 4, v{b}')
    e(f'v_lshl_add_u32 v{a}, v{a}, 8, v{b}')
    e(f's_and_b32 s{sT0}, s{sW}, 3')
    e(f's_lshl_b32 s{sT0}, s{sT0}, 14')
    e(f's_lshr_b32 s{sT1}, s{sW}, 2')
    e(f's_lshl_b32 s{sT1}, s{sT1}, 13')
    e(f's_add_u32 s{sT0}, s{sT0}, s{sT1}')
    e(f's_add_u32 s{sT0}, s{sT0}, {11 * SLOT}')
    e(f'v_add_u32 v{a}, s{sT0}, v{a}')
    vWA8 = 96
    for q in range(8):
        e(f'v_xor_b32 v{vWA8 + q}, {16 * ((q >> 2) * 8 + (q & 3))}, v{a}')
    g.vmwait('gv')
    for i in range(32):
        e(f'v_sub_f32 v{vAA + i}, v{vAA + i}, v{vAB + i}')
    for i in range(32):
        e(f'v_fmac_f32 v{vAB + i}, v{vGV}, v{vAA + i}')
    e('s_barrier')
    for q in range(8):
        e(f'ds_write_b128 v{vWA8 + q}, {vr(vAB + 4 * q, 4)}')
    e(f'v_lshrrev_b32 v{a}, 3, v0')
    e(f'v_and_b32 v{b}, 7, v0')
    e(f'v_lshlrev_b32 v{d}, 4, v{b}')
    e(f'v_lshl_add_u32 v{vHA}, v{a}, 10, v{d}')
    e(f'v_lshlrev_b32 v{b}, 1, v{b}')
    e(f'v_and_b32 v{d}, 15, v{a}')
    e(f'v_xor_b32 v{b}, v{b}, v{d}')
    e(f'v_lshlrev_b32 v{b}, 4, v{b}')
    e(f'v_lshl_add_u32 v{a}, v{a}, 8, v{b}')
    e(f'v_add_u32 v{a}, {11 * SLOT}, v{a}')
    e(f'v_xor_b32 v{b}, 16, v{a}')
    e(f's_lshl_b32 s{sT0}, s{sTT}, 16')
    e(f's_add_u32 s{sT0}, s{sT0}, s{sW2O}')
    e('s_waitcnt lgkmcnt(0)')
    e('s_barrier')
    R = 32
    for k in range(4):
        e(f'ds_read_b128 {vr(R + 8 * k, 4)}, v{a} offset:{k * 16384}')
        e(f'ds_read_b128 {vr(R + 8 * k + 4, 4)}, v{b} offset:{k * 16384}')
    e('s_waitcnt lgkmcnt(4)')
    for i in range(8):
        e(f'v_add_f32 v{R + i}, v{R + i}, v{R + 8 + i}')
    e('s_waitcnt lgkmcnt(0)')
    for i in range(8):
        e(f'v_add_f32 v{R + 16 + i}, v{R + 16 + i}, v{R + 24 + i}')
    for i in range(8):
        e(f'v_add_f32 v{R + i}, v{R + i}, v{R + 16 + i}')
    for i in range(4):
        e(f'v_cvt_pk_bf16_f32 v{R + 8 + i}, v{R + 2 * i}, v{R + 2 * i + 1}')
    e(f'buffer_store_dwordx4 {vr(R + 8, 4)}, v{vHA}, {srd(SOUT)}, s{sT0} offen')
    if opt.get('stamps'):
        e('s_waitcnt vmcnt(0)')
        g.stamp(14)
        e('s_memrealtime s[98:99]')
        e('s_waitcnt lgkmcnt(0)')
        e('s_mov_b32 s97, s98')
        e(f's_lshl_b32 s{sT0}, s2, 3')
        e(f's_add_u32 s{sT0}, s{sT0}, s{sW}')
        e(f's_lshl_b32 s{sT0}, s{sT0}, 7')
        e(f's_add_u32 s{sT0}, s{sT0}, {WS_STAMP}')
        e('s_mov_b64 exec, 1')
        for i in range(18):
            e(f'v_mov_b32 v{vTmp}, s{80 + i}')
            e(f'buffer_store_dword v{vTmp}, v{vL16}, {srd(SWS)}, s{sT0} offen offset:{4 * i}')
    g.lab('L_end')
    e('s_endpgm')
    return g.L


HEAD = open('cdna_kernels/' + NAME + '.s.ref').read().split('; Override')[0]


def emit(opt):
    body = build(opt)
    s = HEAD
    s += f'; @launch grid=(256,1,1) block=(512,1,1) lds={LDS_BYTES}\n'
    s += '.amdgcn_target "amdgcn-amd-amdhsa--gfx950"\n.text\n'
    s += f'.globl {NAME}_kernel\n.p2align 8\n.type {NAME}_kernel,@function\n{NAME}_kernel:\n'
    s += '\n'.join(body) + '\n'
    s += '; padding so that the code prefetch stays inside the section\n.fill 8192, 4, 0xbf800000\n'
    s += f'''.section .rodata,"a"
.p2align 6
.amdhsa_kernel {NAME}_kernel
  .amdhsa_next_free_vgpr 256
  .amdhsa_next_free_sgpr 102
  .amdhsa_accum_offset 256
  .amdhsa_group_segment_fixed_size 0
  .amdhsa_kernarg_size 104
  .amdhsa_user_sgpr_count 2
  .amdhsa_user_sgpr_kernarg_segment_ptr 1
  .amdhsa_system_sgpr_workgroup_id_x 1
.end_amdhsa_kernel
'''
    return s


if __name__ == '__main__':
    out = sys.argv[1]
    opt = {}
    for a in sys.argv[2:]:
        k, v = a.split('=')
        opt[k] = int(v)
    open(out, 'w').write(emit(opt))
```

```python
import sys

NAME = 'gated_mix__linear_kernel_hedgehog__dense_activation_gelu__prompt'

WS_E = 0
WS_FP1 = 0x1000
WS_FKV = 0x10000
WS_G = 0x20000
WS_KVP = 0x40000
KVP_SZ = 4352
WS_ACT = 0x100000
ACT_TB = 120 * 1024
WS_STAMP = 0x1000000
WS_SIZE = 0x2000000
OOB = 0x70000000

SLOT = 8192
MISC = 19 * SLOT
L_WPHI = MISC
L_ZERO = MISC + 2048
L_TAB = MISC + 2176
LDS_BYTES = 163840

LOG2E = 0x3fb8aa3b


def f2u(x):
    import struct
    return struct.unpack('<I', struct.pack('<f', x))[0]


class Gen:
    def __init__(self, opt):
        self.o = opt
        self.L = []
        self.vm = []
        self.nlab = 0
        self.nstamp = 0

    def e(self, s):
        self.L.append('  ' + s)

    def c(self, s):
        self.L.append('  ; ' + s)

    def lab(self, s):
        self.L.append(s + ':')

    def newlab(self, p):
        self.nlab += 1
        return f'L_{p}{self.nlab}'

    def vmop(self, s, tag, cond=False):
        self.e(s)
        self.vm.append((tag, cond))

    def vmwait(self, tags, extra=''):
        if isinstance(tags, str):
            tags = [tags]
        last = -1
        for i, (t, cnd) in enumerate(self.vm):
            if t in tags:
                last = i
        if last < 0:
            if extra:
                self.e(f's_waitcnt {extra}')
            return
        n = sum(1 for (t, cnd) in self.vm[last + 1:] if not cnd)
        assert n <= 63
        self.e(f's_waitcnt vmcnt({n}) {extra}'.rstrip())
        self.vm = self.vm[last + 1:]

    def vmall(self):
        self.e('s_waitcnt vmcnt(0)')
        self.vm = []

    def nop(self, n):
        while n > 0:
            k = min(n, 16)
            self.e(f's_nop {k - 1}')
            n -= k

    def stamp(self, i):
        if not self.o.get('stamps'):
            return
        self.e('s_memtime s[98:99]')
        self.e('s_waitcnt lgkmcnt(0)')
        self.e(f's_mov_b32 s{80 + i}, s98')


def vr(a, n=1):
    return f'v{a}' if n == 1 else f'v[{a}:{a + n - 1}]'


SX, SW1, SW2, SWO, SWS, SOUT, SSM = 32, 36, 40, 44, 48, 52, 56
sW, sTG, sGRP, sCGI, sTT, sCT, sW1K, sW2K = 60, 61, 62, 63, 64, 65, 66, 67
sTAG = 68
sXO = 70
sWO_ = 71
sT0, sT1, sT2, sT3 = 72, 73, 74, 75
sVAL = 76
sC = 78
sCNT = 79
sW2O = 30
sACT = 31


def srd(r):
    return f's[{r}:{r + 3}]'


def build(opt):
    g = Gen(opt)
    e, c = g.e, g.c

    vL = 1
    vXA0, vXA1, vWA, vWA2, vW2A = 2, 3, 4, 5, 6
    vXR = 8
    vT = 12
    vL16 = 7
    vG = 20
    vTmp = 28

    def mksrd(r, lo, size):
        e(f's_mov_b32 s{r}, s{lo}')
        e(f's_mov_b32 s{r + 1}, s{lo + 1}')
        e(f's_mov_b32 s{r + 2}, {size}')
        e(f's_mov_b32 s{r + 3}, 0x20000')

    e('s_cmp_ge_u32 s2, 256')
    e('s_cbranch_scc1 L_end')
    e('s_load_dwordx16 s[4:19], s[0:1], 0')
    e('s_load_dwordx8 s[20:27], s[0:1], 64')
    e('s_load_dwordx2 s[28:29], s[0:1], 96')
    if opt.get('stamps'):
        e('s_memrealtime s[96:97]')
        e('s_memtime s[98:99]')
    e(f'v_lshrrev_b32 v{vTmp}, 6, v0')
    e(f'v_and_b32 v{vL}, 63, v0')
    e(f'v_readfirstlane_b32 s{sW}, v{vTmp}')
    e(f's_and_b32 s{sT0}, s2, 7')
    e(f's_lshr_b32 s{sT1}, s2, 3')
    e(f's_and_b32 s{sTG}, s{sT0}, 1')
    e(f's_lshl_b32 s{sTG}, s{sTG}, 3')
    e(f's_and_b32 s{sT2}, s{sT1}, 7')
    e(f's_add_u32 s{sTG}, s{sTG}, s{sT2}')
    e(f's_lshr_b32 s{sT2}, s{sT0}, 1')
    e(f's_lshr_b32 s{sT3}, s{sT1}, 3')
    e(f's_lshl_b32 s{sCGI}, s{sT2}, 2')
    e(f's_add_u32 s{sCGI}, s{sCGI}, s{sT3}')
    e(f's_lshl_b32 s{sGRP}, s{sT2}, 1')
    e(f's_and_b32 s{sT3}, s{sT3}, 1')
    e(f's_add_u32 s{sGRP}, s{sGRP}, s{sT3}')
    e(f's_lshl_b32 s{sTT}, s{sT0}, 2')
    e(f's_and_b32 s{sT2}, s{sT1}, 3')
    e(f's_add_u32 s{sTT}, s{sTT}, s{sT2}')
    e(f's_lshr_b32 s{sCT}, s{sT1}, 2')
    e(f's_lshl_b32 s{sW1K}, s{sW}, 10')
    e(f's_lshl_b32 s{sW2K}, s{sW}, 11')
    e(f's_lshl_b32 s{sXO}, s{sTG}, 17')
    e(f's_lshl_b32 s{sW2O}, s{sCT}, 7')
    e(f's_mov_b32 s{sC}, {hex(LOG2E)}')
    e(f'v_lshlrev_b32 v{vL16}, 4, v{vL}')
    a, b = vTmp, vTmp + 1
    e(f'v_lshrrev_b32 v{a}, 3, v{vL}')
    e(f'v_lshrrev_b32 v{b}, 4, v{vL}')
    e(f'v_and_b32 v{vXA0}, 7, v{vL}')
    e(f'v_xor_b32 v{vXA0}, v{vXA0}, v{b}')
    e(f'v_lshlrev_b32 v{vXA0}, 4, v{vXA0}')
    e(f'v_lshl_add_u32 v{vXA0}, v{a}, 10, v{vXA0}')
    e(f's_lshl_b32 s{sT0}, s{sW}, 14')
    e(f'v_add_u32 v{vXA0}, s{sT0}, v{vXA0}')
    e(f'v_xor_b32 v{vXA1}, 64, v{vXA0}')
    e(f'v_add_u32 v{vXA1}, {8192 - 1024}, v{vXA1}')
    e(f'v_and_b32 v{b}, 1, v{b}')
    e(f'v_lshlrev_b32 v{b}, 2, v{b}')
    e(f'v_and_b32 v{vWA2}, 7, v{vL}')
    e(f'v_xor_b32 v{vWA2}, v{vWA2}, v{b}')
    e(f'v_lshlrev_b32 v{vWA2}, 4, v{vWA2}')
    e(f's_lshl_b32 s{sT0}, s{sW}, 3')
    e(f'v_add_u32 v{a}, s{sT0}, v{a}')
    e(f'v_lshl_add_u32 v{vW2A}, v{a}, 10, v{vWA2}')
    e('s_waitcnt lgkmcnt(0)')
    if opt.get('stamps'):
        e('s_mov_b32 s80, s98')
    e(f's_load_dword s{sTAG}, s[28:29], {WS_E}')
    mksrd(SX, 4, 2048 * 1024)
    mksrd(SW2, 18, 1376 * 1024)
    mksrd(SWO, 10, 512 * 1024)
    mksrd(SWS, 28, WS_SIZE)
    mksrd(SOUT, 24, 2048 * 1024)

    if opt.get('touch', 1):
        lt = g.newlab('touch')
        t = vTmp + 2
        e(f'v_lshlrev_b32 v{t}, 7, v{vL}')
        items = [(4, 2048 * 1024, 64), (6, 512 * 3072, 48), (14, 512 * 2752, 43), (18, 1376 * 1024, 43), (10, 512 * 1024, 16)]
        for i, (lo, size, n) in enumerate(items):
            nx = g.newlab('tn')
            e(f's_cmp_lg_u32 s{sW}, {i}')
            e(f's_cbranch_scc1 {nx}')
            mksrd(SSM, lo, size)
            e(f's_mul_i32 s{sT0}, s2, {n * 128}')
            if n < 64:
                e(f's_mov_b64 exec, {hex((1 << n) - 1)}' if n <= 16 else f's_bfm_b64 exec, {n}, 0')
            g.vmop(f'buffer_load_dword v{t + 1}, v{t}, {srd(SSM)}, s{sT0} offen', 'touch', cond=True)
            e('s_mov_b64 exec, -1')
            e(f's_branch {lt}')
            g.lab(nx)
        e(f's_cmp_lg_u32 s{sW}, 5')
        e(f's_cbranch_scc1 {lt}')
        e(f's_getpc_b64 s[{sT2}:{sT3}]')
        e(f's_lshr_b32 s{sT0}, s2, 3')
        e(f's_lshl_b32 s{sT0}, s{sT0}, 10')
        e(f'v_add_u32 v{t}, s{sT0}, v{t}')
        e('s_mov_b64 exec, 0xff')
        g.vmop(f'global_load_dword v{t + 1}, v{t}, s[{sT2}:{sT3}]', 'touch', cond=True)
        e('s_mov_b64 exec, -1')
        g.lab(lt)

    def dma_x(stage, slot0):
        e(f's_add_u32 m0, s{sW2K}, {slot0 * SLOT}')
        e(f's_add_u32 s{sT0}, s{sXO}, {stage * 128}')
        g.vmop(f'buffer_load_dwordx4 v{vXA0}, {srd(SX)}, s{sT0} offen lds', f'st{stage}')
        g.vmop(f'buffer_load_dwordx4 v{vXA1}, {srd(SX)}, s{sT0} offen offset:1024 lds', f'st{stage}')

    def dma_w1(tag, stage, pitch, coloff, slot, va):
        e(f's_add_u32 m0, s{sW1K}, {slot * SLOT}')
        e(f's_add_u32 s{sT0}, s{sWO_}, {stage * 64 * pitch + coloff}')
        g.vmop(f'buffer_load_dwordx4 v{va}, {srd(SW1)}, s{sT0} offen lds', tag)

    def w2slot(st):
        return st if st < 19 else st - 19

    def dma_w2(st):
        e(f's_add_u32 m0, s{sW1K}, {w2slot(st) * SLOT}')
        if st < 22:
            e(f's_add_u32 s{sT0}, s{sW2O}, {st * 65536}')
            g.vmop(f'buffer_load_dwordx4 v{vW2A}, {srd(SW2)}, s{sT0} offen lds', f'w2_{st}')
        else:
            e(f's_add_u32 s{sT0}, s{sW2O}, {(st - 22) * 65536}')
            g.vmop(f'buffer_load_dwordx4 v{vW2A}, {srd(SWO)}, s{sT0} offen lds', f'w2_{st}')

    def g_loads():
        e(f's_lshl_b32 s{sT1}, s{sCGI}, 13')
        e(f's_add_u32 s{sT1}, s{sT1}, s{sXO}')
        e(f's_add_u32 s{sT1}, s{sT1}, s{sW1K}')
        g.vmop(f'buffer_load_dwordx4 {vr(vG, 4)}, v{vL16}, {srd(SX)}, s{sT1} offen', 'g')
        g.vmop(f'global_load_dwordx4 {vr(vG + 4, 4)}, v{vL16}, s[22:23]', 'g')

    def g_compute():
        a, b, acc = vTmp, vTmp + 1, vTmp + 2
        for i in range(4):
            e(f'v_lshlrev_b32 v{a}, 16, v{vG + i}')
            e(f'v_lshlrev_b32 v{b}, 16, v{vG + 4 + i}')
            if i == 0:
                e(f'v_mul_f32 v{acc}, v{a}, v{b}')
            else:
                e(f'v_fmac_f32 v{acc}, v{a}, v{b}')
            e(f'v_and_b32 v{a}, 0xffff0000, v{vG + i}')
            e(f'v_and_b32 v{b}, 0xffff0000, v{vG + 4 + i}')
            e(f'v_fmac_f32 v{acc}, v{a}, v{b}')
        for r in (1, 2, 4, 8):
            g.nop(2)
            e(f'v_add_f32_dpp v{acc}, v{acc}, v{acc} row_ror:{r} row_mask:0xf bank_mask:0xf')
        g.nop(1)
        e(f'v_readlane_b32 s{sT0}, v{acc}, 16')
        e(f'v_readlane_b32 s{sT1}, v{acc}, 32')
        e(f'v_readlane_b32 s{sT2}, v{acc}, 48')
        g.nop(1)
        e(f'v_add_f32 v{acc}, s{sT0}, v{acc}')
        e(f'v_add_f32 v{acc}, s{sT1}, v{acc}')
        e(f'v_add_f32 v{acc}, s{sT2}, v{acc}')
        e(f'v_mul_f32 v{acc}, {hex(LOG2E | 0x80000000)}, v{acc}')
        e(f'v_exp_f32 v{acc}, v{acc}')
        g.nop(1)
        e(f'v_add_f32 v{acc}, 1.0, v{acc}')
        e(f'v_rcp_f32 v{acc}, v{acc}')
        e(f's_lshl_b32 s{sT0}, s{sTG}, 9')
        e(f's_lshl_b32 s{sT1}, s{sCGI}, 5')
        e(f's_add_u32 s{sT0}, s{sT0}, s{sT1}')
        e(f's_lshl_b32 s{sT1}, s{sW}, 2')
        e(f's_add_u32 s{sT0}, s{sT0}, s{sT1}')
        e(f's_add_u32 s{sT0}, s{sT0}, {WS_G}')
        e('s_mov_b64 exec, 1')
        g.vmop(f'buffer_store_dword v{acc}, v{vL16}, {srd(SWS)}, s{sT0} offen sc1', 'gst')
        e('s_mov_b64 exec, -1')

    def lane_consts():
        a, b, d = vTmp, vTmp + 1, vTmp + 2
        e(f'v_and_b32 v{a}, 31, v{vL}')
        e(f'v_bfe_u32 v{b}, v{vL}, 1, 3')
        e(f'v_lshrrev_b32 v{d}, 5, v{vL}')
        e(f'v_lshlrev_b32 v{d}, 1, v{d}')
        e(f'v_xor_b32 v{b}, v{b}, v{d}')
        e(f'v_lshlrev_b32 v{b}, 4, v{b}')
        e(f'v_lshl_add_u32 v{b}, v{a}, 7, v{b}')
        e(f's_and_b32 s{sT0}, s{sW}, 3')
        e(f's_lshl_b32 s{sT0}, s{sT0}, 12')
        e(f'v_add_u32 v{vXR}, s{sT0}, v{b}')
        e(f'v_xor_b32 v{vXR + 1}, 16, v{vXR}')
        e(f'v_xor_b32 v{vXR + 2}, 64, v{vXR}')
        e(f'v_xor_b32 v{vXR + 3}, 0x50, v{vXR}')
        e(f'v_and_b32 v{a}, 1, v{vL}')
        e(f'v_lshlrev_b32 v{a}, 5, v{a}')
        e(f'v_bfe_u32 v{b}, v{vL}, 4, 1')
        e(f'v_lshl_add_u32 v{a}, v{b}, 4, v{a}')
        e(f'v_bfe_u32 v{b}, v{vL}, 1, 1')
        e(f'v_lshl_add_u32 v{a}, v{b}, 3, v{a}')
        e(f'v_bfe_u32 v{b}, v{vL}, 3, 1')
        e(f'v_lshl_add_u32 v{a}, v{b}, 6, v{a}')
        e(f'v_bfe_u32 v{b}, v{vL}, 2, 2')
        e(f'v_lshl_add_u32 v{a}, v{b}, 7, v{a}')
        e(f'v_lshrrev_b32 v{b}, 5, v{vL}')
        e(f'v_lshl_add_u32 v{vT + 3}, v{b}, 11, v{a}')
        e(f's_lshr_b32 s{sT0}, s{sW}, 2')
        e(f's_lshl_b32 s{sT0}, s{sT0}, 6')
        e(f'v_xor_b32 v{vT}, s{sT0}, v{vT + 3}')
        e(f'v_add_u32 v{vT + 1}, 0x10000, v{vT}')
        e(f'v_add_u32 v{vT + 2}, 0x20000, v{vT}')
        e(f'v_bfe_u32 v{a}, v{vL}, 2, 1')
        e(f'v_cmp_eq_u32 s[{sVAL}:{sVAL + 1}], v{a}, v{b}')
        e('s_waitcnt lgkmcnt(0)')
        e(f's_mul_i32 s{sTAG}, s{sTAG}, 1664525')
        e(f's_add_u32 s{sTAG}, s{sTAG}, 1013904223')
        e(f's_xor_b32 s{sTAG + 1}, s{sTAG}, 0x9e3779b9')

    def trd(dst, base, slot, ks, v):
        off = slot * SLOT + (32 * (ks >> 1) + 8 * (ks & 1) + 4 * v) * 128
        e(f'ds_read_b64_tr_b16 {vr(dst + 2 * v, 2)}, v{base + (off >> 16)} offset:{off & 0xffff}')

    def mfma(d, a, b, cc):
        e(f'v_mfma_f32_32x32x16_bf16 {vr(d, 16)}, {vr(a, 4)}, {vr(b, 4)}, {cc if isinstance(cc, str) else vr(cc, 16)}')

    def publish(off_code):
        l = g.newlab('pub')
        e(f's_cmp_lg_u32 s{sW}, 0')
        e(f's_cbranch_scc1 {l}')
        off_code()
        e(f'v_mov_b32 v{vTmp}, s{sTAG}')
        e(f'v_mov_b32 v{vTmp + 1}, s{sTAG + 1}')
        e('s_mov_b64 exec, 1')
        g.vmop(f'buffer_store_dwordx2 {vr(vTmp, 2)}, v{vL16}, {srd(SWS)}, s{sT1} offen sc1', 'flag', cond=True)
        e('s_mov_b64 exec, -1')
        g.lab(l)

    def p1flag_off():
        e(f's_lshl_b32 s{sT1}, s{sTG}, 4')
        e(f's_add_u32 s{sT1}, s{sT1}, s{sCGI}')
        e(f's_lshl_b32 s{sT1}, s{sT1}, 7')
        e(f's_add_u32 s{sT1}, s{sT1}, {WS_FP1}')

    def poll(voff, mask, nl=16):
        l, x = g.newlab('poll'), g.newlab('pollx')
        e(f's_mov_b32 s{sCNT}, 0')
        e(f's_mov_b64 exec, {hex(mask)}' if mask != -1 else 's_mov_b64 exec, -1')
        g.lab(l)
        e(f'buffer_load_dwordx2 {vr(vTmp, 2)}, v{voff}, {srd(SWS)}, s{sT1} offen sc1')
        e(f's_add_u32 s{sCNT}, s{sCNT}, 1')
        e(f's_cmp_gt_u32 s{sCNT}, 0x40000')
        e(f's_cbranch_scc1 {x}')
        e('s_waitcnt vmcnt(0)')
        e(f'v_cmp_ne_u64 vcc, s[{sTAG}:{sTAG + 1}], {vr(vTmp, 2)}')
        e(f's_cbranch_vccnz {l}')
        g.lab(x)
        e('s_waitcnt vmcnt(0)')
        e('s_mov_b64 exec, -1')
        g.vm = []

    def softmax(P, E, PP, PN, t):
        mx, mn, s1, s2 = t, t + 1, t + 2, t + 3
        e(f'v_max3_f32 v{mx}, v{P}, v{P + 1}, v{P + 2}')
        e(f'v_min3_f32 v{mn}, v{P}, v{P + 1}, v{P + 2}')
        for i in range(3, 15, 2):
            e(f'v_max3_f32 v{mx}, v{mx}, v{P + i}, v{P + i + 1}')
            e(f'v_min3_f32 v{mn}, v{mn}, v{P + i}, v{P + i + 1}')
        e(f'v_max_f32 v{mx}, v{mx}, v{P + 15}')
        e(f'v_min_f32 v{mn}, v{mn}, v{P + 15}')
        e(f'v_mul_f32 v{mx}, s{sC}, v{mx}')
        e(f'v_mul_f32 v{mn}, s{sC}, v{mn}')
        for i in range(16):
            e(f'v_fma_f32 v{E + i}, v{P + i}, s{sC}, -v{mx}')
            e(f'v_fma_f32 v{P + i}, -v{P + i}, s{sC}, v{mn}')
        for i in range(16):
            e(f'v_exp_f32 v{E + i}, v{E + i}')
            e(f'v_exp_f32 v{P + i}, v{P + i}')
        e(f'v_add_f32 v{s1}, v{E}, v{E + 1}')
        e(f'v_add_f32 v{s2}, v{P}, v{P + 1}')
        for i in range(2, 16):
            e(f'v_add_f32 v{s1}, v{s1}, v{E + i}')
            e(f'v_add_f32 v{s2}, v{s2}, v{P + i}')
        e(f'v_rcp_f32 v{s1}, v{s1}')
        e(f'v_rcp_f32 v{s2}, v{s2}')
        g.nop(1)
        for i in range(16):
            e(f'v_mul_f32 v{E + i}, v{s1}, v{E + i}')
            e(f'v_mul_f32 v{P + i}, v{s2}, v{P + i}')
        for i in range(8):
            e(f'v_cvt_pk_bf16_f32 v{PP + i}, v{E + 2 * i}, v{E + 2 * i + 1}')
            e(f'v_cvt_pk_bf16_f32 v{PN + i}, v{P + 2 * i}, v{P + 2 * i + 1}')

    def pack16(dst, src):
        for i in range(8):
            e(f'v_cvt_pk_bf16_f32 v{dst + i}, v{src + 2 * i}, v{src + 2 * i + 1}')

    vWR = 128

    def p2_bases():
        kg = sT0
        e(f's_and_b32 s{kg}, s{sW}, 3')
        e(f's_lshr_b32 s{sT1}, s{kg}, 1')
        e(f's_lshl_b32 s{sT1}, s{sT1}, 12')
        e(f's_and_b32 s{kg}, s{kg}, 1')
        e(f's_lshl_b32 s{kg}, s{kg}, 10')
        e(f's_add_u32 s{kg}, s{kg}, s{sT1}')
        e(f'v_add_u32 v{vT}, s{kg}, v{vT + 3}')
        e(f'v_add_u32 v{vT + 1}, 0x10000, v{vT}')
        e(f'v_add_u32 v{vT + 2}, 0x20000, v{vT}')
        e(f'v_xor_b32 v{vT + 3}, 64, v{vT}')
        e(f'v_add_u32 v{vT + 4}, 0x10000, v{vT + 3}')
        e(f'v_add_u32 v{vT + 5}, 0x20000, v{vT + 3}')

    def p2_wread(dst, st):
        for nb in range(2):
            for v in range(2):
                trd(dst + 4 * nb, vT + 3 * nb, w2slot(st), 0, v)

    def w2_move():
        for st in range(11):
            p2_wread(vWR + 8 * st, st)
            if st % 3 == 2:
                e('s_waitcnt lgkmcnt(0)')
        e('s_waitcnt lgkmcnt(0)')
        e('s_barrier')

    e(f's_bitcmp1_b32 s{sCGI}, 1')
    e('s_cbranch_scc1 L_ffn')
    vm_common = list(g.vm)

    c('================ QKV workgroup')
    vX = 128
    vAK, vAV = 32, 48
    vF = 64
    vSEL, vAPHI = 80, 88
    mksrd(SW1, 6, 512 * 3072)
    e(f's_mov_b32 s{sT0}, 3072')
    e(f'v_mad_u32_u24 v{vWA}, v{vTmp}, s{sT0}, v{vWA2}')
    e(f's_lshl_b32 s{sWO_}, s{sGRP}, 7')
    l = g.newlab('wphi')
    e(f's_cmp_gt_u32 s{sW}, 1')
    e(f's_cbranch_scc1 {l}')
    mksrd(SSM, 8, 32 * 512)
    e(f's_add_u32 m0, s{sW1K}, {L_WPHI}')
    e(f's_lshl_b32 s{sT0}, s{sGRP}, 11')
    e(f's_add_u32 s{sT0}, s{sT0}, s{sW1K}')
    g.vmop(f'buffer_load_dwordx4 v{vL16}, {srd(SSM)}, s{sT0} offen lds', 'st0', cond=True)
    g.lab(l)

    def q_stage_dma(s):
        dma_x(s, 2 * (s % 3))
        dma_w1(f'st{s}', s, 3072, 1024, 6 + 2 * (s % 3), vWA)
        dma_w1(f'st{s}', s, 3072, 2048, 7 + 2 * (s % 3), vWA)

    def qslot(s):
        return 12 + s if s < 7 else 11

    for s in range(3):
        q_stage_dma(s)
    g_loads()
    lane_consts()
    a, b, d = vTmp, vTmp + 1, vTmp + 2
    e(f'v_bfe_u32 v{a}, v{vL}, 3, 2')
    e(f'v_lshlrev_b32 v{a}, 1, v{a}')
    e(f'v_bfe_u32 v{b}, v{vL}, 1, 1')
    e(f'v_add_u32 v{a}, v{a}, v{b}')
    e(f'v_and_b32 v{b}, 1, v{vL}')
    e(f'v_lshlrev_b32 v{b}, 4, v{b}')
    e(f'v_mov_b32 v{d}, 0x3f80')
    e(f'v_lshlrev_b32 v{d}, v{b}, v{d}')
    e(f'v_cndmask_b32 v{d}, 0, v{d}, s[{sVAL}:{sVAL + 1}]')
    for q in range(8):
        e(f'v_cmp_eq_u32 vcc, {q}, v{a}')
        g.nop(2)
        e(f'v_cndmask_b32 v{vSEL + q}, 0, v{d}, vcc')
    e(f'v_mov_b32 v{a}, 0')
    e(f'v_and_b32 v{b}, 15, v{vL}')
    e(f'v_lshlrev_b32 v{b}, 2, v{b}')
    e(f'v_add_u32 v{b}, {L_ZERO}, v{b}')
    e(f'ds_write_b32 v{b}, v{a}')
    g.stamp(1)

    def q_reads(n):
        s, ks = n >> 2, n & 3
        e(f'ds_read_b128 {vr(vX + 4 * n, 4)}, v{vXR + ks} offset:{2 * (s % 3) * SLOT}')
        buf = vF + 8 * (n & 1)
        for j in range(2):
            for v in range(2):
                trd(buf + 4 * j, vT, 6 + 2 * (s % 3) + j, ks, v)

    g.vmwait('st0', 'lgkmcnt(0)')
    e('s_barrier')
    g.stamp(2)
    q_reads(0)
    qd = 0
    for n in range(32):
        s, ks = n >> 2, n & 3
        if n < 31:
            if ks == 3:
                g.vmwait(f'st{s + 1}', 'lgkmcnt(0)')
                e('s_barrier')
                if s + 3 < 8:
                    q_stage_dma(s + 3)
                else:
                    for _ in range(4):
                        dma_w1('q', qd, 3072, 0, qslot(qd), vWA)
                        qd += 1
                q_reads(n + 1)
            else:
                q_reads(n + 1)
                e('s_waitcnt lgkmcnt(5)')
        else:
            e('s_waitcnt lgkmcnt(0)')
        buf = vF + 8 * (n & 1)
        mfma(vAK, buf, vX + 4 * n, '0' if n == 0 else vAK)
        mfma(vAV, vX + 4 * n, buf + 4, '0' if n == 0 else vAV)
    assert qd == 8
    e('s_barrier')
    g.stamp(3)
    for st in range(7):
        dma_w2(st)
    a, b = vTmp, vTmp + 1
    e(f'v_bfe_u32 v{a}, v{vL}, 2, 2')
    e(f'v_lshlrev_b32 v{a}, 5, v{a}')
    e(f'v_bfe_u32 v{b}, v{vL}, 4, 1')
    e(f'v_lshl_add_u32 v{a}, v{b}, 4, v{a}')
    e(f'v_bfe_u32 v{b}, v{vL}, 1, 1')
    e(f'v_lshl_add_u32 v{a}, v{b}, 3, v{a}')
    e(f'v_lshrrev_b32 v{b}, 5, v{vL}')
    e(f'v_lshl_add_u32 v{a}, v{b}, 9, v{a}')
    e(f's_lshr_b32 s{sT0}, s{sW}, 2')
    e(f's_lshl_b32 s{sT0}, s{sT0}, 10')
    e(f's_add_u32 s{sT0}, s{sT0}, {L_WPHI}')
    e(f'v_add_u32 v{a}, s{sT0}, v{a}')
    for u in range(2):
        for v in range(2):
            e(f'ds_read_b64_tr_b16 {vr(vAPHI + 4 * u + 2 * v, 2)}, v{a} offset:{(8 * u + 4 * v) * 32}')
    vKB = 64
    vVB = 72
    pack16(vKB, vAK)
    pack16(vVB, vAV)
    e('s_waitcnt lgkmcnt(0)')
    for i in range(8):
        e(f'v_cndmask_b32 v{vAPHI + i}, 0, v{vAPHI + i}, s[{sVAL}:{sVAL + 1}]')
    g.nop(2)
    mfma(vAK, vAPHI, vKB, '0')
    mfma(vAK, vAPHI + 4, vKB + 4, vAK)
    g_compute()
    vE, vPP, vPN = 96, 112, 120
    softmax(vAK, vE, vPP, vPN, vTmp)
    g.nop(2)
    mfma(vAK, vPP, vSEL, '0')
    mfma(vAV, vPN, vSEL, '0')
    mfma(vAK, vPP + 4, vSEL + 4, vAK)
    mfma(vAV, vPN + 4, vSEL + 4, vAV)
    vONE = 64
    for i in range(4):
        e(f'v_mov_b32 v{vONE + i}, 0x3f803f80')
    a, b, d = vTmp, vTmp + 1, vTmp + 2
    e(f'v_bfe_u32 v{a}, v{vL}, 3, 2')
    e(f'v_lshlrev_b32 v{a}, 2, v{a}')
    e(f'v_and_b32 v{b}, 3, v{vL}')
    e(f'v_add_u32 v{a}, v{a}, v{b}')
    e(f'v_lshrrev_b32 v{d}, 5, v{vL}')
    e(f'v_lshl_add_u32 v{a}, v{d}, 4, v{a}')
    e(f'v_lshlrev_b32 v{a}, 7, v{a}')
    e(f'v_lshl_add_u32 v{a}, v{b}, 4, v{a}')
    e(f's_lshl_b32 s{sT0}, s{sW}, 12')
    e(f's_add_u32 s{sT0}, s{sT0}, {7 * SLOT}')
    e(f'v_add_u32 v{a}, s{sT0}, v{a}')
    e(f's_lshl_b32 s{sT0}, s{sW}, 8')
    e(f's_add_u32 s{sT0}, s{sT0}, {L_TAB}')
    e(f'v_lshlrev_b32 v{d}, 7, v{d}')
    e(f'v_add_u32 v{d}, s{sT0}, v{d}')
    vSA = 68
    for j in range(4):
        e(f'v_xor_b32 v{vSA + j}, {16 * j}, v{a}')
    pack16(vPP, vAK)
    pack16(vPN, vAV)
    g.nop(2)
    mfma(vAK, vPP, vVB, '0')
    mfma(vAV, vPN, vVB, '0')
    mfma(vE, vPP, vONE, '0')
    mfma(vAK, vPP + 4, vVB + 4, vAK)
    mfma(vAV, vPN + 4, vVB + 4, vAV)
    mfma(vE, vPP + 4, vONE, vE)
    g.nop(12)
    e(f's_mov_b64 exec, s[{sVAL}:{sVAL + 1}]')
    for j in range(4):
        e(f'ds_write_b128 v{vSA + j}, {vr(vAK + 4 * j, 4)}')
    for j in range(4):
        e(f'ds_write_b128 v{vSA + j}, {vr(vAV + 4 * j, 4)} offset:64')
    e('s_mov_b64 exec, -1')
    e('s_waitcnt lgkmcnt(0)')
    mfma(vAK, vPN, vONE, '0')
    mfma(vAK, vPN + 4, vONE, vAK)
    e('s_mov_b32 exec_lo, 1')
    e('s_mov_b32 exec_hi, 1')
    for j in range(4):
        e(f'ds_write_b128 v{d}, {vr(vE + 4 * j, 4)} offset:{16 * j}')
    g.nop(8)
    for j in range(4):
        e(f'ds_write_b128 v{d}, {vr(vAK + 4 * j, 4)} offset:{64 + 16 * j}')
    e('s_mov_b64 exec, -1')
    g.vmwait('q', 'lgkmcnt(0)')
    e('s_barrier')
    g.stamp(4)
    lr, lz, lj = g.newlab('red'), g.newlab('redz'), g.newlab('redj')
    a, b, d = vTmp, vTmp + 1, vTmp + 2
    e(f's_cmp_gt_u32 s{sW}, 4')
    e(f's_cbranch_scc1 {lr}')
    e(f's_cmp_eq_u32 s{sW}, 4')
    e(f's_cbranch_scc1 {lz}')
    e(f'v_lshrrev_b32 v{a}, 2, v{vL}')
    e(f'v_and_b32 v{b}, 3, v{vL}')
    e(f'v_lshlrev_b32 v{b}, 1, v{b}')
    e(f'v_and_b32 v{d}, 3, v{a}')
    e(f'v_xor_b32 v{b}, v{b}, v{d}')
    e(f'v_lshlrev_b32 v{b}, 4, v{b}')
    e(f'v_lshl_add_u32 v{a}, v{a}, 7, v{b}')
    e(f's_lshr_b32 s{sT0}, s{sW}, 1')
    e(f's_lshl_b32 s{sT0}, s{sT0}, 14')
    e(f's_and_b32 s{sT1}, s{sW}, 1')
    e(f's_lshl_b32 s{sT1}, s{sT1}, 11')
    e(f's_add_u32 s{sT0}, s{sT0}, s{sT1}')
    e(f's_add_u32 s{sT0}, s{sT0}, {7 * SLOT}')
    e(f'v_add_u32 v{a}, s{sT0}, v{a}')
    e(f'v_xor_b32 v{b}, 16, v{a}')
    for tb in range(4):
        e(f'ds_read_b128 {vr(vE + 8 * tb, 4)}, v{a} offset:{tb * 4096}')
        e(f'ds_read_b128 {vr(vE + 8 * tb + 4, 4)}, v{b} offset:{tb * 4096}')
    e(f's_branch {lj}')
    g.lab(lz)
    e(f'v_bfe_u32 v{a}, v{vL}, 3, 1')
    e(f'v_lshlrev_b32 v{a}, 10, v{a}')
    e(f'v_bfe_u32 v{b}, v{vL}, 2, 1')
    e(f'v_lshl_add_u32 v{a}, v{b}, 7, v{a}')
    e(f'v_and_b32 v{b}, 3, v{vL}')
    e(f'v_lshl_add_u32 v{a}, v{b}, 5, v{a}')
    e(f'v_add_u32 v{a}, {L_TAB}, v{a}')
    for tb in range(4):
        e(f'ds_read_b128 {vr(vE + 8 * tb, 4)}, v{a} offset:{tb * 256}')
        e(f'ds_read_b128 {vr(vE + 8 * tb + 4, 4)}, v{a} offset:{tb * 256 + 16}')
    e('s_mov_b64 exec, 0xffff')
    g.lab(lj)
    e(f's_lshl_b32 s{sT0}, s{sGRP}, 4')
    e(f's_add_u32 s{sT0}, s{sT0}, s{sTG}')
    e(f's_mul_i32 s{sT0}, s{sT0}, {KVP_SZ}')
    e(f's_add_u32 s{sT0}, s{sT0}, s{sW1K}')
    e(f's_add_u32 s{sT0}, s{sT0}, {WS_KVP}')
    e('s_waitcnt lgkmcnt(0)')
    for i in range(8):
        e(f'v_add_f32 v{vE + i}, v{vE + i}, v{vE + 8 + i}')
        e(f'v_add_f32 v{vE + 16 + i}, v{vE + 16 + i}, v{vE + 24 + i}')
    for i in range(8):
        e(f'v_add_f32 v{vE + i}, v{vE + i}, v{vE + 16 + i}')
    for i in range(4):
        e(f'v_cvt_pk_bf16_f32 v{vE + 8 + i}, v{vE + 2 * i}, v{vE + 2 * i + 1}')
    g.vmop(f'buffer_store_dwordx4 {vr(vE + 8, 4)}, v{vL16}, {srd(SWS)}, s{sT0} offen sc1', 'kvst', cond=True)
    e('s_mov_b64 exec, -1')
    g.lab(lr)

    def qq_reads(n):
        for v in range(2):
            trd(vF + 4 * (n % 4), vT, qslot(n >> 2), n & 3, v)

    for n in range(3):
        qq_reads(n)
    KVPUB = opt.get('kvpub', 12)
    for n in range(32):
        if n == KVPUB:
            g.vmwait(['kvst', 'gst'])
            e('s_barrier')

            def off():
                e(f's_lshl_b32 s{sT1}, s{sGRP}, 4')
                e(f's_add_u32 s{sT1}, s{sT1}, s{sTG}')
                e(f's_lshl_b32 s{sT1}, s{sT1}, 7')
                e(f's_add_u32 s{sT1}, s{sT1}, {WS_FKV}')
            publish(off)
            for st in range(7, 11):
                dma_w2(st)
        if n + 3 < 32:
            qq_reads(n + 3)
            e('s_waitcnt lgkmcnt(6)')
        else:
            e(f's_waitcnt lgkmcnt({2 * (31 - n)})')
        mfma(vAK, vF + 4 * (n % 4), vX + 4 * n, '0' if n == 0 else vAK)
    g.vmwait('w2_10')
    e('s_barrier')
    g.stamp(5)
    for st in range(11, 19):
        dma_w2(st)
    p2_bases()
    pack16(vKB, vAK)
    g.nop(2)
    mfma(vAK, vAPHI, vKB, '0')
    mfma(vAK, vAPHI + 4, vKB + 4, vAK)
    w2_move()
    softmax(vAK, vE, vPP, vPN, vTmp)
    g.stamp(6)
    lg = g.newlab('gat')
    vGA = 32
    vS = 96
    e(f's_cmp_gt_u32 s{sW}, 4')
    e(f's_cbranch_scc1 {lg}')
    e(f'v_lshlrev_b32 v{vTmp + 2}, 7, v{vL}')
    e(f's_lshl_b32 s{sT1}, s{sGRP}, 11')
    e(f's_add_u32 s{sT1}, s{sT1}, {WS_FKV}')
    vm_save = list(g.vm)
    poll(vTmp + 2, 0xffff)
    g.stamp(7)
    e(f's_mul_i32 s{sT0}, s{sGRP}, {16 * KVP_SZ}')
    e(f's_add_u32 s{sT0}, s{sT0}, s{sW1K}')
    e(f's_add_u32 s{sT0}, s{sT0}, {WS_KVP}')
    e(f's_cmp_eq_u32 s{sW}, 4')
    e(f's_cselect_b32 exec_lo, 0xffff, -1')
    e(f's_cselect_b32 exec_hi, 0, -1')
    for p in range(16):
        e(f'buffer_load_dwordx4 {vr(vGA + 4 * p, 4)}, v{vL16}, {srd(SWS)}, s{sT0} offen sc1')
        if p < 15:
            e(f's_add_u32 s{sT0}, s{sT0}, {KVP_SZ}')
    for p in range(16):
        e(f's_waitcnt vmcnt({15 - p})')
        for i in range(4):
            r = vGA + 4 * p + i
            if p == 0:
                e(f'v_lshlrev_b32 v{vS + 2 * i}, 16, v{r}')
                e(f'v_and_b32 v{vS + 2 * i + 1}, 0xffff0000, v{r}')
            else:
                e(f'v_lshlrev_b32 v{vTmp}, 16, v{r}')
                e(f'v_and_b32 v{r}, 0xffff0000, v{r}')
                e(f'v_add_f32 v{vS + 2 * i}, v{vS + 2 * i}, v{vTmp}')
                e(f'v_add_f32 v{vS + 2 * i + 1}, v{vS + 2 * i + 1}, v{r}')
    for i in range(4):
        e(f'v_cvt_pk_bf16_f32 v{vS + 8 + i}, v{vS + 2 * i}, v{vS + 2 * i + 1}')
    e(f's_add_u32 s{sT0}, s{sW1K}, {L_TAB}')
    e(f'v_add_u32 v{vTmp}, s{sT0}, v{vL16}')
    e(f'ds_write_b128 v{vTmp}, {vr(vS + 8, 4)}')
    e('s_mov_b64 exec, -1')
    g.lab(lg)
    g.vm = vm_save
    for st in range(19, 30):
        dma_w2(st)
    a, b, d = vTmp, vTmp + 1, vTmp + 2
    e(f'v_bfe_u32 v{a}, v{vL}, 3, 2')
    e(f'v_lshlrev_b32 v{a}, 2, v{a}')
    e(f'v_and_b32 v{b}, 3, v{vL}')
    e(f'v_add_u32 v{a}, v{a}, v{b}')
    e(f'v_lshrrev_b32 v{d}, 5, v{vL}')
    e(f's_lshr_b32 s{sT0}, s{sW}, 2')
    e(f's_lshl_b32 s{sT0}, s{sT0}, 1')
    e(f'v_add_u32 v{d}, s{sT0}, v{d}')
    e(f'v_lshl_add_u32 v{a}, v{d}, 4, v{a}')
    e(f'v_lshlrev_b32 v{a}, 6, v{a}')
    e(f'v_add_u32 v{a}, {L_TAB}, v{a}')
    e(f'v_lshlrev_b32 v{d}, 6, v{d}')
    e(f'v_add_u32 v{d}, {L_TAB + 4096}, v{d}')
    e(f'v_mov_b32 v{b}, {L_ZERO}')
    e(f'v_cndmask_b32 v{a}, v{b}, v{a}, s[{sVAL}:{sVAL + 1}]')
    e(f'v_cndmask_b32 v{d}, v{b}, v{d}, s[{sVAL}:{sVAL + 1}]')
    e(f's_lshl_b32 s{sT0}, s{sTG}, 2')
    e(f's_and_b32 s{sT1}, s{sW}, 3')
    e(f's_add_u32 s{sT0}, s{sT0}, s{sT1}')
    e(f's_mul_i32 s{sACT}, s{sT0}, {ACT_TB}')
    e(f's_lshl_b32 s{sT0}, s{sGRP}, 12')
    e(f's_add_u32 s{sACT}, s{sACT}, s{sT0}')
    e(f's_lshr_b32 s{sT0}, s{sW}, 2')
    e(f's_lshl_b32 s{sT0}, s{sT0}, 11')
    e(f's_add_u32 s{sACT}, s{sACT}, s{sT0}')
    e(f's_add_u32 s{sACT}, s{sACT}, {WS_ACT + 88 * 1024}')
    e('s_waitcnt lgkmcnt(0)')
    e('s_barrier')
    g.stamp(8)
    vKA, vZA, vNUM, vDEN = 32, 48, 64, 80
    for t in range(4):
        e(f'ds_read_b128 {vr(vZA + 4 * t, 4)}, v{d} offset:{16 * t}')
    for t in range(4):
        e(f'ds_read_b128 {vr(vKA + 4 * t, 4)}, v{a} offset:{16 * t}')
    for t in range(4):
        e(f's_waitcnt lgkmcnt({7 - t})')
        mfma(vDEN, vZA + 4 * t, vPP + 4 * t, '0' if t == 0 else vDEN)
    for t in range(4):
        e(f's_waitcnt lgkmcnt({3 - t})')
        mfma(vNUM, vKA + 4 * t, vPP + 4 * t, '0' if t == 0 else vNUM)
    g.nop(6)
    e(f'v_add_f32 v{vDEN}, {hex(f2u(1e-6))}, v{vDEN}')
    e(f'v_rcp_f32 v{vDEN}, v{vDEN}')
    g.nop(6)
    for i in range(16):
        e(f'v_mul_f32 v{vNUM + i}, v{vDEN}, v{vNUM + i}')
    pack16(vS, vNUM)
    g.vmop(f'buffer_store_dwordx4 {vr(vS, 4)}, v{vL16}, {srd(SWS)}, s{sACT} offen sc1', 'ost')
    g.vmop(f'buffer_store_dwordx4 {vr(vS + 4, 4)}, v{vL16}, {srd(SWS)}, s{sACT} offen offset:1024 sc1', 'ost')
    e('s_branch L_p2')

    g.lab('L_ffn')
    g.vm = list(vm_common)
    c('================ FFN workgroup')
    vA = 32
    vF = 80
    vB = 112
    mksrd(SW1, 14, 512 * 2752)
    mksrd(SSM, 16, 2752)
    e(f's_mov_b32 s{sT0}, 2752')
    e(f'v_mad_u32_u24 v{vWA}, v{vTmp}, s{sT0}, v{vWA2}')
    e(f's_mul_i32 s{sT0}, s{sGRP}, 43')
    e(f's_add_u32 s{sT1}, s{sT0}, 50')
    e(f's_add_u32 s{sT0}, s{sT0}, 7')
    e(f's_lshr_b32 s{sT0}, s{sT0}, 3')
    e(f's_lshr_b32 s{sT1}, s{sT1}, 3')
    e(f's_sub_u32 s{sT1}, s{sT1}, s{sT0}')
    e(f's_lshl_b32 s{sWO_}, s{sT0}, 6')
    e(f's_lshr_b32 s{sT2}, s{sW}, 2')
    e(f's_add_u32 s{sT0}, s{sT0}, s{sT2}')
    e(f's_lshl_b32 s{sACT}, s{sT0}, 11')
    e(f's_lshl_b32 s{sT3}, s{sT0}, 6')
    e(f's_lshl_b32 s{sT0}, s{sTG}, 2')
    e(f's_and_b32 s{sCNT}, s{sW}, 3')
    e(f's_add_u32 s{sT0}, s{sT0}, s{sCNT}')
    e(f's_mul_i32 s{sT0}, s{sT0}, {ACT_TB}')
    e(f's_add_u32 s{sACT}, s{sACT}, s{sT0}')
    e(f's_add_u32 s{sACT}, s{sACT}, {WS_ACT}')
    sLAST = 3
    e(f's_cmp_eq_u32 s{sT1}, 5')
    e(f's_cselect_b32 s{sT0}, {OOB}, 0')
    e(f's_mul_i32 s{sLAST}, s{sT0}, s{sT2}')
    e(f'v_cmp_lt_u32 vcc, 63, v{vWA2}')
    e(f'v_mov_b32 v{vTmp + 1}, s{sT0}')
    g.nop(1)
    e(f'v_cndmask_b32 v{vTmp + 1}, 0, v{vTmp + 1}, vcc')
    e(f'v_add_u32 v{vWA2}, v{vWA}, v{vTmp + 1}')
    a, b = vTmp + 1, vTmp + 2
    vBA = 19

    def colperm_addr(dst):
        e(f'v_bfe_u32 v{a}, v{vL}, 2, 1')
        e(f'v_lshlrev_b32 v{a}, 5, v{a}')
        e(f'v_bfe_u32 v{b}, v{vL}, 3, 2')
        e(f'v_lshl_add_u32 v{a}, v{b}, 3, v{a}')
        e(f'v_and_b32 v{b}, 3, v{vL}')
        e(f'v_lshl_add_u32 v{a}, v{b}, 1, v{a}')
        e(f'v_lshrrev_b32 v{b}, 5, v{vL}')
        e(f'v_lshl_add_u32 v{dst}, v{b}, 28, v{a}')
    colperm_addr(vBA)
    for i in range(3):
        g.vmop(f'buffer_load_ushort v{vB + 4 * i}, v{vBA}, {srd(SSM)}, s{sT3} offen offset:{128 * i}', 'bias')

    def f_stage_dma(s):
        dma_x(s, 2 * (s % 3))
        for j in range(3):
            dma_w1(f'st{s}', s, 2752, 128 * j, 6 + 3 * (s % 3) + j, vWA if j < 2 else vWA2)

    for s in range(3):
        f_stage_dma(s)
    g_loads()
    lane_consts()
    for i in range(3):
        for k in range(1, 4):
            e(f'v_mov_b32 v{vB + 4 * i + k}, 0')
    for k in range(4):
        e(f'v_mov_b32 v{vB + 12 + k}, 0x3f803f80')
    g.stamp(1)

    def f_reads(n):
        s, ks = n >> 2, n & 3
        buf = vF + 16 * (n & 1)
        e(f'ds_read_b128 {vr(buf, 4)}, v{vXR + ks} offset:{2 * (s % 3) * SLOT}')
        for j in range(3):
            for v in range(2):
                trd(buf + 4 + 4 * j, vT, 6 + 3 * (s % 3) + j, ks, v)

    g.vmwait('st0', 'lgkmcnt(0)')
    e('s_barrier')
    g.stamp(2)
    f_reads(0)
    for j in range(3):
        mfma(vA + 16 * j, vB + 4 * j, vB + 12, '0')
    after = {5: [15, 16, 17, 18, 4], 6: [5, 12, 13, 14, 0]}
    rest = [1, 6, 7, 8, 2, 3, 9, 10, 11]
    for n in range(32):
        s, ks = n >> 2, n & 3
        if n < 31:
            if ks == 3:
                g.vmwait(f'st{s + 1}', 'lgkmcnt(0)')
                e('s_barrier')
                if s + 3 < 8:
                    f_stage_dma(s + 3)
                else:
                    for st in after[s]:
                        dma_w2(st)
                f_reads(n + 1)
            else:
                f_reads(n + 1)
                e('s_waitcnt lgkmcnt(7)')
        else:
            e('s_waitcnt lgkmcnt(0)')
        buf = vF + 16 * (n & 1)
        for j in range(3):
            mfma(vA + 16 * j, buf + 4 + 4 * j, buf, vA + 16 * j)
    e('s_barrier')
    g.stamp(3)
    p2_bases()
    g_compute()
    K0 = -2.0 * 0.7978845608028654 * 1.4426950408889634
    K1 = K0 * 0.044715
    e(f's_mov_b32 s{sT2}, {hex(f2u(K1))}')
    e(f'v_mov_b32 v{vBA}, {hex(f2u(K0))}')
    vE = 80

    def gelu(j, dmas):
        A = vA + 16 * j
        dm = list(dmas)

        def tick():
            if dm:
                dma_w2(dm.pop(0))
        for i in range(16):
            e(f'v_mul_f32 v{vE + i}, v{A + i}, v{A + i}')
        tick()
        for i in range(16):
            e(f'v_fma_f32 v{vE + i}, v{vE + i}, s{sT2}, v{vBA}')
        for i in range(16):
            e(f'v_mul_f32 v{vE + i}, v{vE + i}, v{A + i}')
        tick()
        for i in range(16):
            e(f'v_exp_f32 v{vE + i}, v{vE + i}')
        tick()
        for i in range(16):
            e(f'v_add_f32 v{vE + i}, 1.0, v{vE + i}')
        tick()
        for i in range(16):
            e(f'v_rcp_f32 v{vE + i}, v{vE + i}')
        tick()
        for i in range(16):
            e(f'v_mul_f32 v{vE + i}, v{vE + i}, v{A + i}')
        while dm:
            tick()
        pack16(A, vE)
        e(f's_add_u32 s{sT0}, s{sACT}, {4096 * j}')
        if j == 2:
            e(f's_add_u32 s{sT0}, s{sT0}, s{sLAST}')
        g.vmop(f'buffer_store_dwordx4 {vr(A, 4)}, v{vL16}, {srd(SWS)}, s{sT0} offen sc1', 'ost')
        g.vmop(f'buffer_store_dwordx4 {vr(A + 4, 4)}, v{vL16}, {srd(SWS)}, s{sT0} offen offset:1024 sc1', 'ost')

    gelu(0, rest[:5])
    gelu(1, rest[5:])
    gelu(2, [])
    g.stamp(4)
    g.vmwait('w2_10')
    e('s_barrier')
    w2_move()
    g.stamp(5)
    g.vmwait(['ost', 'gst'])
    e('s_barrier')
    publish(p1flag_off)
    for st in range(19, 30):
        dma_w2(st)
    g.stamp(6)
    e('s_branch L_p2b')

    g.lab('L_p2')
    c('QKV workgroups publish o')
    g.vmall()
    e('s_barrier')
    publish(p1flag_off)
    g.lab('L_p2b')
    g.vm = []
    c('================ phase 2')
    g.stamp(9)
    vAB, vAA = 32, 64
    vH = 216
    NH = 10
    vWL = 96
    vB2 = 112
    vHA = 18
    vGV = 19
    a, b = vTmp + 1, vTmp + 2
    mksrd(SSM, 20, 1024)
    colperm_addr(vGV)
    e(f's_and_b32 s{sT2}, s{sW}, 3')
    e(f's_cmp_eq_u32 s{sT2}, 0')
    e(f's_cselect_b32 s{sT0}, 0, {OOB}')
    e(f's_add_u32 s{sT0}, s{sT0}, s{sW2O}')
    for i in range(2):
        e(f'buffer_load_ushort v{vB2 + 4 * i}, v{vGV}, {srd(SSM)}, s{sT0} offen offset:{64 * i}')
        for k in range(1, 4):
            e(f'v_mov_b32 v{vB2 + 4 * i + k}, 0')
    for k in range(4):
        e(f'v_mov_b32 v{vB2 + 8 + k}, 0x3f803f80')
    e(f's_lshl_b32 s{sT0}, s{sTT}, 1')
    e(f's_lshr_b32 s{sT1}, s{sW}, 2')
    e(f's_add_u32 s{sT0}, s{sT0}, s{sT1}')
    e(f's_lshl_b32 s{sACT}, s{sT0}, 7')
    e(f's_add_u32 s{sACT}, s{sACT}, {WS_G}')
    e(f's_mul_i32 s{sT0}, s{sT0}, {ACT_TB}')
    e(f's_lshl_b32 s{sT1}, s{sT2}, 10')
    e(f's_add_u32 s{sT0}, s{sT0}, s{sT1}')
    e(f'v_add_u32 v{vHA}, s{sT0}, v{vL16}')
    e(f's_cmp_ge_u32 s{sT2}, 2')
    e(f's_cselect_b32 s3, {OOB}, 0')
    e(f's_add_u32 s3, s3, {WS_ACT + 21 * 4096}')
    vFO = 20
    e(f'v_lshlrev_b32 v{vFO}, 7, v{vL}')

    def fl_off():
        e(f's_lshr_b32 s{sT1}, s{sTT}, 1')
        e(f's_lshl_b32 s{sT1}, s{sT1}, 11')
        e(f's_add_u32 s{sT1}, s{sT1}, {WS_FP1}')
    fl_off()
    poll(vFO, 0xcccc)
    g.stamp(10)

    def hload(st):
        r = vH + 4 * (st % NH)
        if st == 21:
            g.vmop(f'buffer_load_dwordx4 {vr(r, 4)}, v{vHA}, {srd(SWS)}, s3 offen sc1', f'h{st}')
        else:
            e(f's_mov_b32 s{sT0}, {WS_ACT + st * 4096}')
            g.vmop(f'buffer_load_dwordx4 {vr(r, 4)}, v{vHA}, {srd(SWS)}, s{sT0} offen sc1', f'h{st}')

    for st in range(NH):
        hload(st)
    e('s_barrier')
    for nb in range(2):
        mfma(vAB + 16 * nb, vB2 + 4 * nb, vB2 + 8, '0')
    nxt = NH
    for st in range(30):
        if st == 22:
            g.stamp(11)
            fl_off()
            poll(vFO, 0x3333)
            g.stamp(12)
            for k in range(22, 30):
                hload(k)
            e(f'v_and_b32 v{vTmp}, 31, v{vL}')
            e(f'v_lshlrev_b32 v{vTmp}, 2, v{vTmp}')
            g.vmop(f'buffer_load_dword v{vGV}, v{vTmp}, {srd(SWS)}, s{sACT} offen sc1', 'gv')
        if 11 <= st + 1 < 30:
            p2_wread(vWL + 8 * ((st + 1) & 1), st + 1)
        lg_ = ''
        if st >= 11:
            lg_ = 'lgkmcnt(4)' if st + 1 < 30 else 'lgkmcnt(0)'
        g.vmwait(f'h{st}', lg_)
        w = vWR + 8 * st if st < 11 else vWL + 8 * (st & 1)
        acc = vAB if st < 22 else vAA
        for nb in range(2):
            mfma(acc + 16 * nb, w + 4 * nb, vH + 4 * (st % NH), '0' if st == 22 else acc + 16 * nb)
        if nxt < 22:
            hload(nxt)
            nxt += 1
    g.stamp(13)
    lE = g.newlab('ep')
    e(f's_cmp_lg_u32 s2, 255')
    e(f's_cbranch_scc1 {lE}')
    e(f's_cmp_lg_u32 s{sW}, 7')
    e(f's_cbranch_scc1 {lE}')
    vm_save = list(g.vm)
    for k in range(4):
        e(f's_mov_b32 s{sT1}, {WS_FP1 + k * 8192}')
        poll(vFO, -1)
    e(f'v_mov_b32 v{vTmp}, s{sTAG}')
    e('s_mov_b64 exec, 1')
    e(f'buffer_store_dword v{vTmp}, v{vL16}, {srd(SWS)}, 0 offen sc1')
    e('s_mov_b64 exec, -1')
    g.lab(lE)
    g.vm = vm_save
    a, b, d = vTmp, vTmp + 1, vTmp + 2
    e(f'v_and_b32 v{a}, 31, v{vL}')
    e(f'v_and_b32 v{b}, 15, v{vL}')
    e(f'v_lshrrev_b32 v{d}, 5, v{vL}')
    e(f'v_lshlrev_b32 v{d}, 2, v{d}')
    e(f'v_xor_b32 v{b}, v{b}, v{d}')
    e(f'v_lshlrev_b32 v{b}, 4, v{b}')
    e(f'v_lshl_add_u32 v{a}, v{a}, 8, v{b}')
    e(f's_and_b32 s{sT0}, s{sW}, 3')
    e(f's_lshl_b32 s{sT0}, s{sT0}, 14')
    e(f's_lshr_b32 s{sT1}, s{sW}, 2')
    e(f's_lshl_b32 s{sT1}, s{sT1}, 13')
    e(f's_add_u32 s{sT0}, s{sT0}, s{sT1}')
    e(f's_add_u32 s{sT0}, s{sT0}, {11 * SLOT}')
    e(f'v_add_u32 v{a}, s{sT0}, v{a}')
    vWA8 = 96
    for q in range(8):
        e(f'v_xor_b32 v{vWA8 + q}, {16 * ((q >> 2) * 8 + (q & 3))}, v{a}')
    g.vmwait('gv')
    for i in range(32):
        e(f'v_sub_f32 v{vAA + i}, v{vAA + i}, v{vAB + i}')
    for i in range(32):
        e(f'v_fmac_f32 v{vAB + i}, v{vGV}, v{vAA + i}')
    e('s_barrier')
    for q in range(8):
        e(f'ds_write_b128 v{vWA8 + q}, {vr(vAB + 4 * q, 4)}')
    e(f'v_lshrrev_b32 v{a}, 3, v0')
    e(f'v_and_b32 v{b}, 7, v0')
    e(f'v_lshlrev_b32 v{d}, 4, v{b}')
    e(f'v_lshl_add_u32 v{vHA}, v{a}, 10, v{d}')
    e(f'v_lshlrev_b32 v{b}, 1, v{b}')
    e(f'v_and_b32 v{d}, 15, v{a}')
    e(f'v_xor_b32 v{b}, v{b}, v{d}')
    e(f'v_lshlrev_b32 v{b}, 4, v{b}')
    e(f'v_lshl_add_u32 v{a}, v{a}, 8, v{b}')
    e(f'v_add_u32 v{a}, {11 * SLOT}, v{a}')
    e(f'v_xor_b32 v{b}, 16, v{a}')
    e(f's_lshl_b32 s{sT0}, s{sTT}, 16')
    e(f's_add_u32 s{sT0}, s{sT0}, s{sW2O}')
    e('s_waitcnt lgkmcnt(0)')
    e('s_barrier')
    R = 32
    for k in range(4):
        e(f'ds_read_b128 {vr(R + 8 * k, 4)}, v{a} offset:{k * 16384}')
        e(f'ds_read_b128 {vr(R + 8 * k + 4, 4)}, v{b} offset:{k * 16384}')
    e('s_waitcnt lgkmcnt(4)')
    for i in range(8):
        e(f'v_add_f32 v{R + i}, v{R + i}, v{R + 8 + i}')
    e('s_waitcnt lgkmcnt(0)')
    for i in range(8):
        e(f'v_add_f32 v{R + 16 + i}, v{R + 16 + i}, v{R + 24 + i}')
    for i in range(8):
        e(f'v_add_f32 v{R + i}, v{R + i}, v{R + 16 + i}')
    for i in range(4):
        e(f'v_cvt_pk_bf16_f32 v{R + 8 + i}, v{R + 2 * i}, v{R + 2 * i + 1}')
    e(f'buffer_store_dwordx4 {vr(R + 8, 4)}, v{vHA}, {srd(SOUT)}, s{sT0} offen')
    if opt.get('stamps'):
        e('s_waitcnt vmcnt(0)')
        g.stamp(14)
        e('s_memrealtime s[98:99]')
        e('s_waitcnt lgkmcnt(0)')
        e('s_mov_b32 s97, s98')
        e(f's_lshl_b32 s{sT0}, s2, 3')
        e(f's_add_u32 s{sT0}, s{sT0}, s{sW}')
        e(f's_lshl_b32 s{sT0}, s{sT0}, 7')
        e(f's_add_u32 s{sT0}, s{sT0}, {WS_STAMP}')
        e('s_mov_b64 exec, 1')
        for i in range(18):
            e(f'v_mov_b32 v{vTmp}, s{80 + i}')
            e(f'buffer_store_dword v{vTmp}, v{vL16}, {srd(SWS)}, s{sT0} offen offset:{4 * i}')
        if opt.get('dbg'):
            e(f's_cmp_lg_u32 s2, {opt["dbg"]}')
            e('s_cbranch_scc1 L_end')
            e(f's_cmp_lg_u32 s{sW}, 0')
            e('s_cbranch_scc1 L_end')
            mksrd(SSM, 26, 256)
            e('s_sub_u32 s95, s97, s96')
            e('s_add_u32 s95, s95, s80')
            for i in range(16):
                e(f's_sub_u32 s{sT0}, s{80 + i}, s80')
                e(f'v_mov_b32 v{vTmp}, s{sT0}')
                e(f'buffer_store_dword v{vTmp}, v{vL16}, {srd(SSM)}, 0 offen offset:{4 * i}')
    g.lab('L_end')
    e('s_endpgm')
    return g.L


HEAD = open('cdna_kernels/' + NAME + '.s.ref').read().split('; Override')[0]


def emit(opt):
    body = build(opt)
    s = HEAD
    main = f'; @launch kernel={NAME}_kernel grid=(256,1,1) block=(512,1,1) lds={LDS_BYTES}\n'
    emp = '; @launch kernel=empty_kernel grid=(256,1,1) block=(64,1,1) lds=0\n'
    if opt.get('list') == 1:
        s += main + emp
    elif opt.get('list') == 2:
        s += emp + main
    elif opt.get('list') == 3:
        s += main
    else:
        s += f'; @launch grid=(256,1,1) block=(512,1,1) lds={LDS_BYTES}\n'
    s += '.amdgcn_target "amdgcn-amd-amdhsa--gfx950"\n.text\n'
    s += f'.globl {NAME}_kernel\n.p2align 8\n.type {NAME}_kernel,@function\n{NAME}_kernel:\n'
    s += '\n'.join(body) + '\n'
    s += '; padding so that the code prefetch stays inside the section\n.fill 8192, 4, 0xbf800000\n'
    s += f'''.section .rodata,"a"
.p2align 6
.amdhsa_kernel {NAME}_kernel
  .amdhsa_next_free_vgpr 256
  .amdhsa_next_free_sgpr 102
  .amdhsa_accum_offset 256
  .amdhsa_group_segment_fixed_size 0
  .amdhsa_kernarg_size 104
  .amdhsa_user_sgpr_count 2
  .amdhsa_user_sgpr_kernarg_segment_ptr 1
  .amdhsa_system_sgpr_workgroup_id_x 1
.end_amdhsa_kernel
'''
    if opt.get('list') in (1, 2):
        s += '''.text
.globl empty_kernel
.p2align 8
.type empty_kernel,@function
empty_kernel:
  s_endpgm
.section .rodata,"a"
.p2align 6
.amdhsa_kernel empty_kernel
  .amdhsa_next_free_vgpr 8
  .amdhsa_next_free_sgpr 16
  .amdhsa_accum_offset 8
  .amdhsa_group_segment_fixed_size 0
  .amdhsa_kernarg_size 104
  .amdhsa_user_sgpr_count 2
  .amdhsa_user_sgpr_kernarg_segment_ptr 1
  .amdhsa_system_sgpr_workgroup_id_x 1
.end_amdhsa_kernel
'''
    return s


if __name__ == '__main__':
    out = sys.argv[1]
    opt = {}
    for a in sys.argv[2:]:
        k, v = a.split('=')
        opt[k] = int(v)
    open(out, 'w').write(emit(opt))
```

```python
import sys

NAME = 'gated_mix__linear_kernel_hedgehog__dense_activation_gelu__prompt'

WS_E = 0
WS_FP1 = 0x1000
WS_FKV = 0x10000
WS_G = 0x20000
WS_KVP = 0x40000
KVP_SZ = 4352
WS_ACT = 0x100000
ACT_TB = 120 * 1024
WS_STAMP = 0x1000000
WS_SIZE = 0x2000000
OOB = 0x70000000

SLOT = 8192
MISC = 19 * SLOT
L_WPHI = MISC
L_ZERO = MISC + 2048
L_TAB = MISC + 2176
LDS_BYTES = 163840

LOG2E = 0x3fb8aa3b


def f2u(x):
    import struct
    return struct.unpack('<I', struct.pack('<f', x))[0]


class Gen:
    def __init__(self, opt):
        self.o = opt
        self.L = []
        self.vm = []
        self.nlab = 0
        self.nstamp = 0

    def e(self, s):
        self.L.append('  ' + s)

    def c(self, s):
        self.L.append('  ; ' + s)

    def lab(self, s):
        self.L.append(s + ':')

    def newlab(self, p):
        self.nlab += 1
        return f'L_{p}{self.nlab}'

    def vmop(self, s, tag, cond=False):
        self.e(s)
        self.vm.append((tag, cond))

    def vmwait(self, tags, extra=''):
        if isinstance(tags, str):
            tags = [tags]
        last = -1
        for i, (t, cnd) in enumerate(self.vm):
            if t in tags:
                last = i
        if last < 0:
            if extra:
                self.e(f's_waitcnt {extra}')
            return
        n = sum(1 for (t, cnd) in self.vm[last + 1:] if not cnd)
        assert n <= 63
        self.e(f's_waitcnt vmcnt({n}) {extra}'.rstrip())
        self.vm = self.vm[last + 1:]

    def vmall(self):
        self.e('s_waitcnt vmcnt(0)')
        self.vm = []

    def nop(self, n):
        while n > 0:
            k = min(n, 16)
            self.e(f's_nop {k - 1}')
            n -= k

    def stamp(self, i):
        if not self.o.get('stamps'):
            return
        self.e('s_memtime s[98:99]')
        self.e('s_waitcnt lgkmcnt(0)')
        self.e(f's_mov_b32 s{80 + i}, s98')


def vr(a, n=1):
    return f'v{a}' if n == 1 else f'v[{a}:{a + n - 1}]'


SX, SW1, SW2, SWO, SWS, SOUT, SSM = 32, 36, 40, 44, 48, 52, 56
sW, sTG, sGRP, sCGI, sTT, sCT, sW1K, sW2K = 60, 61, 62, 63, 64, 65, 66, 67
sTAG = 68
sXO = 70
sWO_ = 71
sT0, sT1, sT2, sT3 = 72, 73, 74, 75
sVAL = 76
sC = 78
sCNT = 79
sW2O = 30
sACT = 31


def srd(r):
    return f's[{r}:{r + 3}]'


def build(opt):
    g = Gen(opt)
    e, c = g.e, g.c

    vL = 1
    vXA0, vXA1, vWA, vWA2, vW2A = 2, 3, 4, 5, 6
    vXR = 8
    vT = 12
    vL16 = 7
    vG = 20
    vTmp = 28

    def mksrd(r, lo, size):
        e(f's_mov_b32 s{r}, s{lo}')
        e(f's_mov_b32 s{r + 1}, s{lo + 1}')
        e(f's_mov_b32 s{r + 2}, {size}')
        e(f's_mov_b32 s{r + 3}, 0x20000')

    e('s_cmp_ge_u32 s2, 256')
    e('s_cbranch_scc1 L_end')
    e('s_load_dwordx16 s[4:19], s[0:1], 0')
    e('s_load_dwordx8 s[20:27], s[0:1], 64')
    e('s_load_dwordx2 s[28:29], s[0:1], 96')
    if opt.get('stamps'):
        e('s_memrealtime s[96:97]')
        e('s_memtime s[98:99]')
    e(f'v_lshrrev_b32 v{vTmp}, 6, v0')
    e(f'v_and_b32 v{vL}, 63, v0')
    e(f'v_readfirstlane_b32 s{sW}, v{vTmp}')
    e(f's_and_b32 s{sT0}, s2, 7')
    e(f's_lshr_b32 s{sT1}, s2, 3')
    e(f's_and_b32 s{sTG}, s{sT0}, 1')
    e(f's_lshl_b32 s{sTG}, s{sTG}, 3')
    e(f's_and_b32 s{sT2}, s{sT1}, 7')
    e(f's_add_u32 s{sTG}, s{sTG}, s{sT2}')
    e(f's_lshr_b32 s{sT2}, s{sT0}, 1')
    e(f's_lshr_b32 s{sT3}, s{sT1}, 3')
    e(f's_lshl_b32 s{sCGI}, s{sT2}, 2')
    e(f's_add_u32 s{sCGI}, s{sCGI}, s{sT3}')
    e(f's_lshl_b32 s{sGRP}, s{sT2}, 1')
    e(f's_and_b32 s{sT3}, s{sT3}, 1')
    e(f's_add_u32 s{sGRP}, s{sGRP}, s{sT3}')
    e(f's_lshl_b32 s{sTT}, s{sT0}, 2')
    e(f's_and_b32 s{sT2}, s{sT1}, 3')
    e(f's_add_u32 s{sTT}, s{sTT}, s{sT2}')
    e(f's_lshr_b32 s{sCT}, s{sT1}, 2')
    e(f's_lshl_b32 s{sW1K}, s{sW}, 10')
    e(f's_lshl_b32 s{sW2K}, s{sW}, 11')
    e(f's_lshl_b32 s{sXO}, s{sTG}, 17')
    e(f's_lshl_b32 s{sW2O}, s{sCT}, 7')
    e(f's_mov_b32 s{sC}, {hex(LOG2E)}')
    e(f'v_lshlrev_b32 v{vL16}, 4, v{vL}')
    a, b = vTmp, vTmp + 1
    e(f'v_lshrrev_b32 v{a}, 3, v{vL}')
    e(f'v_lshrrev_b32 v{b}, 4, v{vL}')
    e(f'v_and_b32 v{vXA0}, 7, v{vL}')
    e(f'v_xor_b32 v{vXA0}, v{vXA0}, v{b}')
    e(f'v_lshlrev_b32 v{vXA0}, 4, v{vXA0}')
    e(f'v_lshl_add_u32 v{vXA0}, v{a}, 10, v{vXA0}')
    e(f's_lshl_b32 s{sT0}, s{sW}, 14')
    e(f'v_add_u32 v{vXA0}, s{sT0}, v{vXA0}')
    e(f'v_xor_b32 v{vXA1}, 64, v{vXA0}')
    e(f'v_add_u32 v{vXA1}, {8192 - 1024}, v{vXA1}')
    e(f'v_and_b32 v{b}, 1, v{b}')
    e(f'v_lshlrev_b32 v{b}, 2, v{b}')
    e(f'v_and_b32 v{vWA2}, 7, v{vL}')
    e(f'v_xor_b32 v{vWA2}, v{vWA2}, v{b}')
    e(f'v_lshlrev_b32 v{vWA2}, 4, v{vWA2}')
    e(f's_lshl_b32 s{sT0}, s{sW}, 3')
    e(f'v_add_u32 v{a}, s{sT0}, v{a}')
    e(f'v_lshl_add_u32 v{vW2A}, v{a}, 10, v{vWA2}')
    e('s_waitcnt lgkmcnt(0)')
    if opt.get('stamps'):
        e('s_mov_b32 s80, s98')
    e(f's_load_dword s{sTAG}, s[28:29], {WS_E}')
    mksrd(SX, 4, 2048 * 1024)
    mksrd(SW2, 18, 1376 * 1024)
    mksrd(SWO, 10, 512 * 1024)
    mksrd(SWS, 28, WS_SIZE)
    mksrd(SOUT, 24, 2048 * 1024)

    if opt.get('touch', 1):
        lt = g.newlab('touch')
        t = vTmp + 2
        e(f'v_lshlrev_b32 v{t}, 7, v{vL}')
        items = [(4, 2048 * 1024, 64), (6, 512 * 3072, 48), (14, 512 * 2752, 43), (18, 1376 * 1024, 43), (10, 512 * 1024, 16)]
        for i, (lo, size, n) in enumerate(items):
            nx = g.newlab('tn')
            e(f's_cmp_lg_u32 s{sW}, {i}')
            e(f's_cbranch_scc1 {nx}')
            mksrd(SSM, lo, size)
            e(f's_mul_i32 s{sT0}, s2, {n * 128}')
            if n < 64:
                e(f's_mov_b64 exec, {hex((1 << n) - 1)}' if n <= 16 else f's_bfm_b64 exec, {n}, 0')
            g.vmop(f'buffer_load_dword v{t + 1}, v{t}, {srd(SSM)}, s{sT0} offen', 'touch', cond=True)
            e('s_mov_b64 exec, -1')
            e(f's_branch {lt}')
            g.lab(nx)
        e(f's_cmp_lg_u32 s{sW}, 5')
        e(f's_cbranch_scc1 {lt}')
        e(f's_getpc_b64 s[{sT2}:{sT3}]')
        e(f's_lshr_b32 s{sT0}, s2, 3')
        e(f's_lshl_b32 s{sT0}, s{sT0}, 10')
        e(f'v_add_u32 v{t}, s{sT0}, v{t}')
        e('s_mov_b64 exec, 0xff')
        g.vmop(f'global_load_dword v{t + 1}, v{t}, s[{sT2}:{sT3}]', 'touch', cond=True)
        e('s_mov_b64 exec, -1')
        g.lab(lt)

    def dma_x(stage, slot0):
        e(f's_add_u32 m0, s{sW2K}, {slot0 * SLOT}')
        e(f's_add_u32 s{sT0}, s{sXO}, {stage * 128}')
        g.vmop(f'buffer_load_dwordx4 v{vXA0}, {srd(SX)}, s{sT0} offen lds', f'st{stage}')
        g.vmop(f'buffer_load_dwordx4 v{vXA1}, {srd(SX)}, s{sT0} offen offset:1024 lds', f'st{stage}')

    def dma_w1(tag, stage, pitch, coloff, slot, va):
        e(f's_add_u32 m0, s{sW1K}, {slot * SLOT}')
        e(f's_add_u32 s{sT0}, s{sWO_}, {stage * 64 * pitch + coloff}')
        g.vmop(f'buffer_load_dwordx4 v{va}, {srd(SW1)}, s{sT0} offen lds', tag)

    def w2slot(st):
        return st if st < 19 else st - 19

    def dma_w2(st):
        e(f's_add_u32 m0, s{sW1K}, {w2slot(st) * SLOT}')
        if st < 22:
            e(f's_add_u32 s{sT0}, s{sW2O}, {st * 65536}')
            g.vmop(f'buffer_load_dwordx4 v{vW2A}, {srd(SW2)}, s{sT0} offen lds', f'w2_{st}')
        else:
            e(f's_add_u32 s{sT0}, s{sW2O}, {(st - 22) * 65536}')
            g.vmop(f'buffer_load_dwordx4 v{vW2A}, {srd(SWO)}, s{sT0} offen lds', f'w2_{st}')

    def g_loads():
        e(f's_lshl_b32 s{sT1}, s{sCGI}, 13')
        e(f's_add_u32 s{sT1}, s{sT1}, s{sXO}')
        e(f's_add_u32 s{sT1}, s{sT1}, s{sW1K}')
        g.vmop(f'buffer_load_dwordx4 {vr(vG, 4)}, v{vL16}, {srd(SX)}, s{sT1} offen', 'g')
        g.vmop(f'global_load_dwordx4 {vr(vG + 4, 4)}, v{vL16}, s[22:23]', 'g')

    def g_compute():
        a, b, acc = vTmp, vTmp + 1, vTmp + 2
        for i in range(4):
            e(f'v_lshlrev_b32 v{a}, 16, v{vG + i}')
            e(f'v_lshlrev_b32 v{b}, 16, v{vG + 4 + i}')
            if i == 0:
                e(f'v_mul_f32 v{acc}, v{a}, v{b}')
            else:
                e(f'v_fmac_f32 v{acc}, v{a}, v{b}')
            e(f'v_and_b32 v{a}, 0xffff0000, v{vG + i}')
            e(f'v_and_b32 v{b}, 0xffff0000, v{vG + 4 + i}')
            e(f'v_fmac_f32 v{acc}, v{a}, v{b}')
        for r in (1, 2, 4, 8):
            g.nop(2)
            e(f'v_add_f32_dpp v{acc}, v{acc}, v{acc} row_ror:{r} row_mask:0xf bank_mask:0xf')
        g.nop(1)
        e(f'v_readlane_b32 s{sT0}, v{acc}, 16')
        e(f'v_readlane_b32 s{sT1}, v{acc}, 32')
        e(f'v_readlane_b32 s{sT2}, v{acc}, 48')
        g.nop(1)
        e(f'v_add_f32 v{acc}, s{sT0}, v{acc}')
        e(f'v_add_f32 v{acc}, s{sT1}, v{acc}')
        e(f'v_add_f32 v{acc}, s{sT2}, v{acc}')
        e(f'v_mul_f32 v{acc}, {hex(LOG2E | 0x80000000)}, v{acc}')
        e(f'v_exp_f32 v{acc}, v{acc}')
        g.nop(1)
        e(f'v_add_f32 v{acc}, 1.0, v{acc}')
        e(f'v_rcp_f32 v{acc}, v{acc}')
        e(f's_lshl_b32 s{sT0}, s{sTG}, 9')
        e(f's_lshl_b32 s{sT1}, s{sCGI}, 5')
        e(f's_add_u32 s{sT0}, s{sT0}, s{sT1}')
        e(f's_lshl_b32 s{sT1}, s{sW}, 2')
        e(f's_add_u32 s{sT0}, s{sT0}, s{sT1}')
        e(f's_add_u32 s{sT0}, s{sT0}, {WS_G}')
        e('s_mov_b64 exec, 1')
        g.vmop(f'buffer_store_dword v{acc}, v{vL16}, {srd(SWS)}, s{sT0} offen sc1', 'gst')
        e('s_mov_b64 exec, -1')

    def lane_consts():
        a, b, d = vTmp, vTmp + 1, vTmp + 2
        e(f'v_and_b32 v{a}, 31, v{vL}')
        e(f'v_bfe_u32 v{b}, v{vL}, 1, 3')
        e(f'v_lshrrev_b32 v{d}, 5, v{vL}')
        e(f'v_lshlrev_b32 v{d}, 1, v{d}')
        e(f'v_xor_b32 v{b}, v{b}, v{d}')
        e(f'v_lshlrev_b32 v{b}, 4, v{b}')
        e(f'v_lshl_add_u32 v{b}, v{a}, 7, v{b}')
        e(f's_and_b32 s{sT0}, s{sW}, 3')
        e(f's_lshl_b32 s{sT0}, s{sT0}, 12')
        e(f'v_add_u32 v{vXR}, s{sT0}, v{b}')
        e(f'v_xor_b32 v{vXR + 1}, 16, v{vXR}')
        e(f'v_xor_b32 v{vXR + 2}, 64, v{vXR}')
        e(f'v_xor_b32 v{vXR + 3}, 0x50, v{vXR}')
        e(f'v_and_b32 v{a}, 1, v{vL}')
        e(f'v_lshlrev_b32 v{a}, 5, v{a}')
        e(f'v_bfe_u32 v{b}, v{vL}, 4, 1')
        e(f'v_lshl_add_u32 v{a}, v{b}, 4, v{a}')
        e(f'v_bfe_u32 v{b}, v{vL}, 1, 1')
        e(f'v_lshl_add_u32 v{a}, v{b}, 3, v{a}')
        e(f'v_bfe_u32 v{b}, v{vL}, 3, 1')
        e(f'v_lshl_add_u32 v{a}, v{b}, 6, v{a}')
        e(f'v_bfe_u32 v{b}, v{vL}, 2, 2')
        e(f'v_lshl_add_u32 v{a}, v{b}, 7, v{a}')
        e(f'v_lshrrev_b32 v{b}, 5, v{vL}')
        e(f'v_lshl_add_u32 v{vT + 3}, v{b}, 11, v{a}')
        e(f's_lshr_b32 s{sT0}, s{sW}, 2')
        e(f's_lshl_b32 s{sT0}, s{sT0}, 6')
        e(f'v_xor_b32 v{vT}, s{sT0}, v{vT + 3}')
        e(f'v_add_u32 v{vT + 1}, 0x10000, v{vT}')
        e(f'v_add_u32 v{vT + 2}, 0x20000, v{vT}')
        e(f'v_bfe_u32 v{a}, v{vL}, 2, 1')
        e(f'v_cmp_eq_u32 s[{sVAL}:{sVAL + 1}], v{a}, v{b}')
        e('s_waitcnt lgkmcnt(0)')
        e(f's_mul_i32 s{sTAG}, s{sTAG}, 1664525')
        e(f's_add_u32 s{sTAG}, s{sTAG}, 1013904223')
        e(f's_xor_b32 s{sTAG + 1}, s{sTAG}, 0x9e3779b9')

    def trd(dst, base, slot, ks, v):
        off = slot * SLOT + (32 * (ks >> 1) + 8 * (ks & 1) + 4 * v) * 128
        e(f'ds_read_b64_tr_b16 {vr(dst + 2 * v, 2)}, v{base + (off >> 16)} offset:{off & 0xffff}')

    def mfma(d, a, b, cc):
        e(f'v_mfma_f32_32x32x16_bf16 {vr(d, 16)}, {vr(a, 4)}, {vr(b, 4)}, {cc if isinstance(cc, str) else vr(cc, 16)}')

    def publish(off_code):
        l = g.newlab('pub')
        e(f's_cmp_lg_u32 s{sW}, 0')
        e(f's_cbranch_scc1 {l}')
        off_code()
        e(f'v_mov_b32 v{vTmp}, s{sTAG}')
        e(f'v_mov_b32 v{vTmp + 1}, s{sTAG + 1}')
        e('s_mov_b64 exec, 1')
        g.vmop(f'buffer_store_dwordx2 {vr(vTmp, 2)}, v{vL16}, {srd(SWS)}, s{sT1} offen sc1', 'flag', cond=True)
        e('s_mov_b64 exec, -1')
        g.lab(l)

    def p1flag_off():
        e(f's_lshl_b32 s{sT1}, s{sTG}, 4')
        e(f's_add_u32 s{sT1}, s{sT1}, s{sCGI}')
        e(f's_lshl_b32 s{sT1}, s{sT1}, 7')
        e(f's_add_u32 s{sT1}, s{sT1}, {WS_FP1}')

    def poll(voff, mask, nl=16):
        l, x = g.newlab('poll'), g.newlab('pollx')
        e(f's_mov_b32 s{sCNT}, 0')
        e(f's_mov_b64 exec, {hex(mask)}' if mask != -1 else 's_mov_b64 exec, -1')
        g.lab(l)
        e(f'buffer_load_dwordx2 {vr(vTmp, 2)}, v{voff}, {srd(SWS)}, s{sT1} offen sc1')
        e(f's_add_u32 s{sCNT}, s{sCNT}, 1')
        e(f's_cmp_gt_u32 s{sCNT}, 0x40000')
        e(f's_cbranch_scc1 {x}')
        e('s_waitcnt vmcnt(0)')
        e(f'v_cmp_ne_u64 vcc, s[{sTAG}:{sTAG + 1}], {vr(vTmp, 2)}')
        e(f's_cbranch_vccnz {l}')
        g.lab(x)
        e('s_waitcnt vmcnt(0)')
        e('s_mov_b64 exec, -1')
        g.vm = []

    def softmax(P, E, PP, PN, t):
        mx, mn, s1, s2 = t, t + 1, t + 2, t + 3
        e(f'v_max3_f32 v{mx}, v{P}, v{P + 1}, v{P + 2}')
        e(f'v_min3_f32 v{mn}, v{P}, v{P + 1}, v{P + 2}')
        for i in range(3, 15, 2):
            e(f'v_max3_f32 v{mx}, v{mx}, v{P + i}, v{P + i + 1}')
            e(f'v_min3_f32 v{mn}, v{mn}, v{P + i}, v{P + i + 1}')
        e(f'v_max_f32 v{mx}, v{mx}, v{P + 15}')
        e(f'v_min_f32 v{mn}, v{mn}, v{P + 15}')
        e(f'v_mul_f32 v{mx}, s{sC}, v{mx}')
        e(f'v_mul_f32 v{mn}, s{sC}, v{mn}')
        for i in range(16):
            e(f'v_fma_f32 v{E + i}, v{P + i}, s{sC}, -v{mx}')
            e(f'v_fma_f32 v{P + i}, -v{P + i}, s{sC}, v{mn}')
        for i in range(16):
            e(f'v_exp_f32 v{E + i}, v{E + i}')
            e(f'v_exp_f32 v{P + i}, v{P + i}')
        e(f'v_add_f32 v{s1}, v{E}, v{E + 1}')
        e(f'v_add_f32 v{s2}, v{P}, v{P + 1}')
        for i in range(2, 16):
            e(f'v_add_f32 v{s1}, v{s1}, v{E + i}')
            e(f'v_add_f32 v{s2}, v{s2}, v{P + i}')
        e(f'v_rcp_f32 v{s1}, v{s1}')
        e(f'v_rcp_f32 v{s2}, v{s2}')
        g.nop(1)
        for i in range(16):
            e(f'v_mul_f32 v{E + i}, v{s1}, v{E + i}')
            e(f'v_mul_f32 v{P + i}, v{s2}, v{P + i}')
        for i in range(8):
            e(f'v_cvt_pk_bf16_f32 v{PP + i}, v{E + 2 * i}, v{E + 2 * i + 1}')
            e(f'v_cvt_pk_bf16_f32 v{PN + i}, v{P + 2 * i}, v{P + 2 * i + 1}')

    def pack16(dst, src):
        for i in range(8):
            e(f'v_cvt_pk_bf16_f32 v{dst + i}, v{src + 2 * i}, v{src + 2 * i + 1}')

    vWR = 128

    def p2_bases():
        kg = sT0
        e(f's_and_b32 s{kg}, s{sW}, 3')
        e(f's_lshr_b32 s{sT1}, s{kg}, 1')
        e(f's_lshl_b32 s{sT1}, s{sT1}, 12')
        e(f's_and_b32 s{kg}, s{kg}, 1')
        e(f's_lshl_b32 s{kg}, s{kg}, 10')
        e(f's_add_u32 s{kg}, s{kg}, s{sT1}')
        e(f'v_add_u32 v{vT}, s{kg}, v{vT + 3}')
        e(f'v_add_u32 v{vT + 1}, 0x10000, v{vT}')
        e(f'v_add_u32 v{vT + 2}, 0x20000, v{vT}')
        e(f'v_xor_b32 v{vT + 3}, 64, v{vT}')
        e(f'v_add_u32 v{vT + 4}, 0x10000, v{vT + 3}')
        e(f'v_add_u32 v{vT + 5}, 0x20000, v{vT + 3}')

    def p2_wread(dst, st):
        for nb in range(2):
            for v in range(2):
                trd(dst + 4 * nb, vT + 3 * nb, w2slot(st), 0, v)

    def w2_move():
        for st in range(11):
            p2_wread(vWR + 8 * st, st)
            if st % 3 == 2:
                e('s_waitcnt lgkmcnt(0)')
        e('s_waitcnt lgkmcnt(0)')
        e('s_barrier')

    e(f's_bitcmp1_b32 s{sCGI}, 1')
    e('s_cbranch_scc1 L_ffn')
    vm_common = list(g.vm)

    c('================ QKV workgroup')
    vX = 128
    vAK, vAV = 32, 48
    vF = 64
    vSEL, vAPHI = 80, 88
    mksrd(SW1, 6, 512 * 3072)
    e(f's_mov_b32 s{sT0}, 3072')
    e(f'v_mad_u32_u24 v{vWA}, v{vTmp}, s{sT0}, v{vWA2}')
    e(f's_lshl_b32 s{sWO_}, s{sGRP}, 7')
    l = g.newlab('wphi')
    e(f's_cmp_gt_u32 s{sW}, 1')
    e(f's_cbranch_scc1 {l}')
    mksrd(SSM, 8, 32 * 512)
    e(f's_add_u32 m0, s{sW1K}, {L_WPHI}')
    e(f's_lshl_b32 s{sT0}, s{sGRP}, 11')
    e(f's_add_u32 s{sT0}, s{sT0}, s{sW1K}')
    g.vmop(f'buffer_load_dwordx4 v{vL16}, {srd(SSM)}, s{sT0} offen lds', 'st0', cond=True)
    g.lab(l)

    def q_stage_dma(s):
        dma_x(s, 2 * (s % 3))
        dma_w1(f'st{s}', s, 3072, 1024, 6 + 2 * (s % 3), vWA)
        dma_w1(f'st{s}', s, 3072, 2048, 7 + 2 * (s % 3), vWA)

    def qslot(s):
        return 12 + s if s < 7 else 11

    for s in range(3):
        q_stage_dma(s)
    g_loads()
    lane_consts()
    a, b, d = vTmp, vTmp + 1, vTmp + 2
    e(f'v_bfe_u32 v{a}, v{vL}, 3, 2')
    e(f'v_lshlrev_b32 v{a}, 1, v{a}')
    e(f'v_bfe_u32 v{b}, v{vL}, 1, 1')
    e(f'v_add_u32 v{a}, v{a}, v{b}')
    e(f'v_and_b32 v{b}, 1, v{vL}')
    e(f'v_lshlrev_b32 v{b}, 4, v{b}')
    e(f'v_mov_b32 v{d}, 0x3f80')
    e(f'v_lshlrev_b32 v{d}, v{b}, v{d}')
    e(f'v_cndmask_b32 v{d}, 0, v{d}, s[{sVAL}:{sVAL + 1}]')
    for q in range(8):
        e(f'v_cmp_eq_u32 vcc, {q}, v{a}')
        g.nop(2)
        e(f'v_cndmask_b32 v{vSEL + q}, 0, v{d}, vcc')
    e(f'v_mov_b32 v{a}, 0')
    e(f'v_and_b32 v{b}, 15, v{vL}')
    e(f'v_lshlrev_b32 v{b}, 2, v{b}')
    e(f'v_add_u32 v{b}, {L_ZERO}, v{b}')
    e(f'ds_write_b32 v{b}, v{a}')
    g.stamp(1)

    def q_reads(n):
        s, ks = n >> 2, n & 3
        e(f'ds_read_b128 {vr(vX + 4 * n, 4)}, v{vXR + ks} offset:{2 * (s % 3) * SLOT}')
        buf = vF + 8 * (n & 1)
        for j in range(2):
            for v in range(2):
                trd(buf + 4 * j, vT, 6 + 2 * (s % 3) + j, ks, v)

    g.vmwait('st0', 'lgkmcnt(0)')
    e('s_barrier')
    g.stamp(2)
    q_reads(0)
    qd = 0
    for n in range(32):
        s, ks = n >> 2, n & 3
        if n < 31:
            if ks == 3:
                g.vmwait(f'st{s + 1}', 'lgkmcnt(0)')
                e('s_barrier')
                if s + 3 < 8:
                    q_stage_dma(s + 3)
                else:
                    for _ in range(4):
                        dma_w1('q', qd, 3072, 0, qslot(qd), vWA)
                        qd += 1
                q_reads(n + 1)
            else:
                q_reads(n + 1)
                e('s_waitcnt lgkmcnt(5)')
        else:
            e('s_waitcnt lgkmcnt(0)')
        buf = vF + 8 * (n & 1)
        mfma(vAK, buf, vX + 4 * n, '0' if n == 0 else vAK)
        mfma(vAV, vX + 4 * n, buf + 4, '0' if n == 0 else vAV)
    assert qd == 8
    e('s_barrier')
    g.stamp(3)
    for st in range(7):
        dma_w2(st)
    a, b = vTmp, vTmp + 1
    e(f'v_bfe_u32 v{a}, v{vL}, 2, 2')
    e(f'v_lshlrev_b32 v{a}, 5, v{a}')
    e(f'v_bfe_u32 v{b}, v{vL}, 4, 1')
    e(f'v_lshl_add_u32 v{a}, v{b}, 4, v{a}')
    e(f'v_bfe_u32 v{b}, v{vL}, 1, 1')
    e(f'v_lshl_add_u32 v{a}, v{b}, 3, v{a}')
    e(f'v_lshrrev_b32 v{b}, 5, v{vL}')
    e(f'v_lshl_add_u32 v{a}, v{b}, 9, v{a}')
    e(f's_lshr_b32 s{sT0}, s{sW}, 2')
    e(f's_lshl_b32 s{sT0}, s{sT0}, 10')
    e(f's_add_u32 s{sT0}, s{sT0}, {L_WPHI}')
    e(f'v_add_u32 v{a}, s{sT0}, v{a}')
    for u in range(2):
        for v in range(2):
            e(f'ds_read_b64_tr_b16 {vr(vAPHI + 4 * u + 2 * v, 2)}, v{a} offset:{(8 * u + 4 * v) * 32}')
    vKB = 64
    vVB = 72
    pack16(vKB, vAK)
    pack16(vVB, vAV)
    e('s_waitcnt lgkmcnt(0)')
    for i in range(8):
        e(f'v_cndmask_b32 v{vAPHI + i}, 0, v{vAPHI + i}, s[{sVAL}:{sVAL + 1}]')
    g.nop(2)
    mfma(vAK, vAPHI, vKB, '0')
    mfma(vAK, vAPHI + 4, vKB + 4, vAK)
    g_compute()
    vE, vPP, vPN = 96, 112, 120
    softmax(vAK, vE, vPP, vPN, vTmp)
    g.nop(2)
    mfma(vAK, vPP, vSEL, '0')
    mfma(vAV, vPN, vSEL, '0')
    mfma(vAK, vPP + 4, vSEL + 4, vAK)
    mfma(vAV, vPN + 4, vSEL + 4, vAV)
    vONE = 64
    for i in range(4):
        e(f'v_mov_b32 v{vONE + i}, 0x3f803f80')
    a, b, d = vTmp, vTmp + 1, vTmp + 2
    e(f'v_bfe_u32 v{a}, v{vL}, 3, 2')
    e(f'v_lshlrev_b32 v{a}, 2, v{a}')
    e(f'v_and_b32 v{b}, 3, v{vL}')
    e(f'v_add_u32 v{a}, v{a}, v{b}')
    e(f'v_lshrrev_b32 v{d}, 5, v{vL}')
    e(f'v_lshl_add_u32 v{a}, v{d}, 4, v{a}')
    e(f'v_lshlrev_b32 v{a}, 7, v{a}')
    e(f'v_lshl_add_u32 v{a}, v{b}, 4, v{a}')
    e(f's_lshl_b32 s{sT0}, s{sW}, 12')
    e(f's_add_u32 s{sT0}, s{sT0}, {7 * SLOT}')
    e(f'v_add_u32 v{a}, s{sT0}, v{a}')
    e(f's_lshl_b32 s{sT0}, s{sW}, 8')
    e(f's_add_u32 s{sT0}, s{sT0}, {L_TAB}')
    e(f'v_lshlrev_b32 v{d}, 7, v{d}')
    e(f'v_add_u32 v{d}, s{sT0}, v{d}')
    vSA = 68
    for j in range(4):
        e(f'v_xor_b32 v{vSA + j}, {16 * j}, v{a}')
    pack16(vPP, vAK)
    pack16(vPN, vAV)
    g.nop(2)
    mfma(vAK, vPP, vVB, '0')
    mfma(vAV, vPN, vVB, '0')
    mfma(vE, vPP, vONE, '0')
    mfma(vAK, vPP + 4, vVB + 4, vAK)
    mfma(vAV, vPN + 4, vVB + 4, vAV)
    mfma(vE, vPP + 4, vONE, vE)
    g.nop(12)
    e(f's_mov_b64 exec, s[{sVAL}:{sVAL + 1}]')
    for j in range(4):
        e(f'ds_write_b128 v{vSA + j}, {vr(vAK + 4 * j, 4)}')
    for j in range(4):
        e(f'ds_write_b128 v{vSA + j}, {vr(vAV + 4 * j, 4)} offset:64')
    e('s_mov_b64 exec, -1')
    e('s_waitcnt lgkmcnt(0)')
    mfma(vAK, vPN, vONE, '0')
    mfma(vAK, vPN + 4, vONE, vAK)
    e('s_mov_b32 exec_lo, 1')
    e('s_mov_b32 exec_hi, 1')
    for j in range(4):
        e(f'ds_write_b128 v{d}, {vr(vE + 4 * j, 4)} offset:{16 * j}')
    g.nop(8)
    for j in range(4):
        e(f'ds_write_b128 v{d}, {vr(vAK + 4 * j, 4)} offset:{64 + 16 * j}')
    e('s_mov_b64 exec, -1')
    g.vmwait('q', 'lgkmcnt(0)')
    e('s_barrier')
    g.stamp(4)
    lr, lz, lj = g.newlab('red'), g.newlab('redz'), g.newlab('redj')
    a, b, d = vTmp, vTmp + 1, vTmp + 2
    e(f's_cmp_gt_u32 s{sW}, 4')
    e(f's_cbranch_scc1 {lr}')
    e(f's_cmp_eq_u32 s{sW}, 4')
    e(f's_cbranch_scc1 {lz}')
    e(f'v_lshrrev_b32 v{a}, 2, v{vL}')
    e(f'v_and_b32 v{b}, 3, v{vL}')
    e(f'v_lshlrev_b32 v{b}, 1, v{b}')
    e(f'v_and_b32 v{d}, 3, v{a}')
    e(f'v_xor_b32 v{b}, v{b}, v{d}')
    e(f'v_lshlrev_b32 v{b}, 4, v{b}')
    e(f'v_lshl_add_u32 v{a}, v{a}, 7, v{b}')
    e(f's_lshr_b32 s{sT0}, s{sW}, 1')
    e(f's_lshl_b32 s{sT0}, s{sT0}, 14')
    e(f's_and_b32 s{sT1}, s{sW}, 1')
    e(f's_lshl_b32 s{sT1}, s{sT1}, 11')
    e(f's_add_u32 s{sT0}, s{sT0}, s{sT1}')
    e(f's_add_u32 s{sT0}, s{sT0}, {7 * SLOT}')
    e(f'v_add_u32 v{a}, s{sT0}, v{a}')
    e(f'v_xor_b32 v{b}, 16, v{a}')
    for tb in range(4):
        e(f'ds_read_b128 {vr(vE + 8 * tb, 4)}, v{a} offset:{tb * 4096}')
        e(f'ds_read_b128 {vr(vE + 8 * tb + 4, 4)}, v{b} offset:{tb * 4096}')
    e(f's_branch {lj}')
    g.lab(lz)
    e(f'v_bfe_u32 v{a}, v{vL}, 3, 1')
    e(f'v_lshlrev_b32 v{a}, 10, v{a}')
    e(f'v_bfe_u32 v{b}, v{vL}, 2, 1')
    e(f'v_lshl_add_u32 v{a}, v{b}, 7, v{a}')
    e(f'v_and_b32 v{b}, 3, v{vL}')
    e(f'v_lshl_add_u32 v{a}, v{b}, 5, v{a}')
    e(f'v_add_u32 v{a}, {L_TAB}, v{a}')
    for tb in range(4):
        e(f'ds_read_b128 {vr(vE + 8 * tb, 4)}, v{a} offset:{tb * 256}')
        e(f'ds_read_b128 {vr(vE + 8 * tb + 4, 4)}, v{a} offset:{tb * 256 + 16}')
    e('s_mov_b64 exec, 0xffff')
    g.lab(lj)
    e(f's_lshl_b32 s{sT0}, s{sGRP}, 4')
    e(f's_add_u32 s{sT0}, s{sT0}, s{sTG}')
    e(f's_mul_i32 s{sT0}, s{sT0}, {KVP_SZ}')
    e(f's_add_u32 s{sT0}, s{sT0}, s{sW1K}')
    e(f's_add_u32 s{sT0}, s{sT0}, {WS_KVP}')
    e('s_waitcnt lgkmcnt(0)')
    for i in range(8):
        e(f'v_add_f32 v{vE + i}, v{vE + i}, v{vE + 8 + i}')
        e(f'v_add_f32 v{vE + 16 + i}, v{vE + 16 + i}, v{vE + 24 + i}')
    for i in range(8):
        e(f'v_add_f32 v{vE + i}, v{vE + i}, v{vE + 16 + i}')
    for i in range(4):
        e(f'v_cvt_pk_bf16_f32 v{vE + 8 + i}, v{vE + 2 * i}, v{vE + 2 * i + 1}')
    g.vmop(f'buffer_store_dwordx4 {vr(vE + 8, 4)}, v{vL16}, {srd(SWS)}, s{sT0} offen sc1', 'kvst', cond=True)
    e('s_mov_b64 exec, -1')
    g.lab(lr)

    def qq_reads(n):
        for v in range(2):
            trd(vF + 4 * (n % 4), vT, qslot(n >> 2), n & 3, v)

    for n in range(3):
        qq_reads(n)
    KVPUB = opt.get('kvpub', 12)
    for n in range(32):
        if n == KVPUB:
            g.vmwait(['kvst', 'gst'])
            e('s_barrier')

            def off():
                e(f's_lshl_b32 s{sT1}, s{sGRP}, 4')
                e(f's_add_u32 s{sT1}, s{sT1}, s{sTG}')
                e(f's_lshl_b32 s{sT1}, s{sT1}, 7')
                e(f's_add_u32 s{sT1}, s{sT1}, {WS_FKV}')
            publish(off)
            for st in range(7, 11):
                dma_w2(st)
        if n + 3 < 32:
            qq_reads(n + 3)
            e('s_waitcnt lgkmcnt(6)')
        else:
            e(f's_waitcnt lgkmcnt({2 * (31 - n)})')
        mfma(vAK, vF + 4 * (n % 4), vX + 4 * n, '0' if n == 0 else vAK)
    g.vmwait('w2_10')
    e('s_barrier')
    g.stamp(5)
    for st in range(11, 19):
        dma_w2(st)
    p2_bases()
    pack16(vKB, vAK)
    g.nop(2)
    mfma(vAK, vAPHI, vKB, '0')
    mfma(vAK, vAPHI + 4, vKB + 4, vAK)
    w2_move()
    softmax(vAK, vE, vPP, vPN, vTmp)
    g.stamp(6)
    lg = g.newlab('gat')
    vGA = 32
    vS = 96
    e(f's_cmp_gt_u32 s{sW}, 4')
    e(f's_cbranch_scc1 {lg}')
    e(f'v_lshlrev_b32 v{vTmp + 2}, 7, v{vL}')
    e(f's_lshl_b32 s{sT1}, s{sGRP}, 11')
    e(f's_add_u32 s{sT1}, s{sT1}, {WS_FKV}')
    vm_save = list(g.vm)
    poll(vTmp + 2, 0xffff)
    g.stamp(7)
    e(f's_mul_i32 s{sT0}, s{sGRP}, {16 * KVP_SZ}')
    e(f's_add_u32 s{sT0}, s{sT0}, s{sW1K}')
    e(f's_add_u32 s{sT0}, s{sT0}, {WS_KVP}')
    e(f's_cmp_eq_u32 s{sW}, 4')
    e(f's_cselect_b32 exec_lo, 0xffff, -1')
    e(f's_cselect_b32 exec_hi, 0, -1')
    for p in range(16):
        e(f'buffer_load_dwordx4 {vr(vGA + 4 * p, 4)}, v{vL16}, {srd(SWS)}, s{sT0} offen sc1')
        if p < 15:
            e(f's_add_u32 s{sT0}, s{sT0}, {KVP_SZ}')
    for p in range(16):
        e(f's_waitcnt vmcnt({15 - p})')
        for i in range(4):
            r = vGA + 4 * p + i
            if p == 0:
                e(f'v_lshlrev_b32 v{vS + 2 * i}, 16, v{r}')
                e(f'v_and_b32 v{vS + 2 * i + 1}, 0xffff0000, v{r}')
            else:
                e(f'v_lshlrev_b32 v{vTmp}, 16, v{r}')
                e(f'v_and_b32 v{r}, 0xffff0000, v{r}')
                e(f'v_add_f32 v{vS + 2 * i}, v{vS + 2 * i}, v{vTmp}')
                e(f'v_add_f32 v{vS + 2 * i + 1}, v{vS + 2 * i + 1}, v{r}')
    for i in range(4):
        e(f'v_cvt_pk_bf16_f32 v{vS + 8 + i}, v{vS + 2 * i}, v{vS + 2 * i + 1}')
    e(f's_add_u32 s{sT0}, s{sW1K}, {L_TAB}')
    e(f'v_add_u32 v{vTmp}, s{sT0}, v{vL16}')
    e(f'ds_write_b128 v{vTmp}, {vr(vS + 8, 4)}')
    e('s_mov_b64 exec, -1')
    g.lab(lg)
    g.vm = vm_save
    for st in range(19, 30):
        dma_w2(st)
    a, b, d = vTmp, vTmp + 1, vTmp + 2
    e(f'v_bfe_u32 v{a}, v{vL}, 3, 2')
    e(f'v_lshlrev_b32 v{a}, 2, v{a}')
    e(f'v_and_b32 v{b}, 3, v{vL}')
    e(f'v_add_u32 v{a}, v{a}, v{b}')
    e(f'v_lshrrev_b32 v{d}, 5, v{vL}')
    e(f's_lshr_b32 s{sT0}, s{sW}, 2')
    e(f's_lshl_b32 s{sT0}, s{sT0}, 1')
    e(f'v_add_u32 v{d}, s{sT0}, v{d}')
    e(f'v_lshl_add_u32 v{a}, v{d}, 4, v{a}')
    e(f'v_lshlrev_b32 v{a}, 6, v{a}')
    e(f'v_add_u32 v{a}, {L_TAB}, v{a}')
    e(f'v_lshlrev_b32 v{d}, 6, v{d}')
    e(f'v_add_u32 v{d}, {L_TAB + 4096}, v{d}')
    e(f'v_mov_b32 v{b}, {L_ZERO}')
    e(f'v_cndmask_b32 v{a}, v{b}, v{a}, s[{sVAL}:{sVAL + 1}]')
    e(f'v_cndmask_b32 v{d}, v{b}, v{d}, s[{sVAL}:{sVAL + 1}]')
    e(f's_lshl_b32 s{sT0}, s{sTG}, 2')
    e(f's_and_b32 s{sT1}, s{sW}, 3')
    e(f's_add_u32 s{sT0}, s{sT0}, s{sT1}')
    e(f's_mul_i32 s{sACT}, s{sT0}, {ACT_TB}')
    e(f's_lshl_b32 s{sT0}, s{sGRP}, 12')
    e(f's_add_u32 s{sACT}, s{sACT}, s{sT0}')
    e(f's_lshr_b32 s{sT0}, s{sW}, 2')
    e(f's_lshl_b32 s{sT0}, s{sT0}, 11')
    e(f's_add_u32 s{sACT}, s{sACT}, s{sT0}')
    e(f's_add_u32 s{sACT}, s{sACT}, {WS_ACT + 88 * 1024}')
    e('s_waitcnt lgkmcnt(0)')
    e('s_barrier')
    g.stamp(8)
    vKA, vZA, vNUM, vDEN = 32, 48, 64, 80
    for t in range(4):
        e(f'ds_read_b128 {vr(vZA + 4 * t, 4)}, v{d} offset:{16 * t}')
    for t in range(4):
        e(f'ds_read_b128 {vr(vKA + 4 * t, 4)}, v{a} offset:{16 * t}')
    for t in range(4):
        e(f's_waitcnt lgkmcnt({7 - t})')
        mfma(vDEN, vZA + 4 * t, vPP + 4 * t, '0' if t == 0 else vDEN)
    for t in range(4):
        e(f's_waitcnt lgkmcnt({3 - t})')
        mfma(vNUM, vKA + 4 * t, vPP + 4 * t, '0' if t == 0 else vNUM)
    g.nop(6)
    e(f'v_add_f32 v{vDEN}, {hex(f2u(1e-6))}, v{vDEN}')
    e(f'v_rcp_f32 v{vDEN}, v{vDEN}')
    g.nop(6)
    for i in range(16):
        e(f'v_mul_f32 v{vNUM + i}, v{vDEN}, v{vNUM + i}')
    pack16(vS, vNUM)
    g.vmop(f'buffer_store_dwordx4 {vr(vS, 4)}, v{vL16}, {srd(SWS)}, s{sACT} offen sc1', 'ost')
    g.vmop(f'buffer_store_dwordx4 {vr(vS + 4, 4)}, v{vL16}, {srd(SWS)}, s{sACT} offen offset:1024 sc1', 'ost')
    e('s_branch L_p2')

    g.lab('L_ffn')
    g.vm = list(vm_common)
    c('================ FFN workgroup')
    vA = 32
    vF = 80
    vB = 112
    mksrd(SW1, 14, 512 * 2752)
    mksrd(SSM, 16, 2752)
    e(f's_mov_b32 s{sT0}, 2752')
    e(f'v_mad_u32_u24 v{vWA}, v{vTmp}, s{sT0}, v{vWA2}')
    e(f's_mul_i32 s{sT0}, s{sGRP}, 43')
    e(f's_add_u32 s{sT1}, s{sT0}, 50')
    e(f's_add_u32 s{sT0}, s{sT0}, 7')
    e(f's_lshr_b32 s{sT0}, s{sT0}, 3')
    e(f's_lshr_b32 s{sT1}, s{sT1}, 3')
    e(f's_sub_u32 s{sT1}, s{sT1}, s{sT0}')
    e(f's_lshl_b32 s{sWO_}, s{sT0}, 6')
    e(f's_lshr_b32 s{sT2}, s{sW}, 2')
    e(f's_add_u32 s{sT0}, s{sT0}, s{sT2}')
    e(f's_lshl_b32 s{sACT}, s{sT0}, 11')
    e(f's_lshl_b32 s{sT3}, s{sT0}, 6')
    e(f's_lshl_b32 s{sT0}, s{sTG}, 2')
    e(f's_and_b32 s{sCNT}, s{sW}, 3')
    e(f's_add_u32 s{sT0}, s{sT0}, s{sCNT}')
    e(f's_mul_i32 s{sT0}, s{sT0}, {ACT_TB}')
    e(f's_add_u32 s{sACT}, s{sACT}, s{sT0}')
    e(f's_add_u32 s{sACT}, s{sACT}, {WS_ACT}')
    sLAST = 3
    e(f's_cmp_eq_u32 s{sT1}, 5')
    e(f's_cselect_b32 s{sT0}, {OOB}, 0')
    e(f's_mul_i32 s{sLAST}, s{sT0}, s{sT2}')
    e(f'v_cmp_lt_u32 vcc, 63, v{vWA2}')
    e(f'v_mov_b32 v{vTmp + 1}, s{sT0}')
    g.nop(1)
    e(f'v_cndmask_b32 v{vTmp + 1}, 0, v{vTmp + 1}, vcc')
    e(f'v_add_u32 v{vWA2}, v{vWA}, v{vTmp + 1}')
    a, b = vTmp + 1, vTmp + 2
    vBA = 19

    def colperm_addr(dst):
        e(f'v_bfe_u32 v{a}, v{vL}, 2, 1')
        e(f'v_lshlrev_b32 v{a}, 5, v{a}')
        e(f'v_bfe_u32 v{b}, v{vL}, 3, 2')
        e(f'v_lshl_add_u32 v{a}, v{b}, 3, v{a}')
        e(f'v_and_b32 v{b}, 3, v{vL}')
        e(f'v_lshl_add_u32 v{a}, v{b}, 1, v{a}')
        e(f'v_lshrrev_b32 v{b}, 5, v{vL}')
        e(f'v_lshl_add_u32 v{dst}, v{b}, 28, v{a}')
    colperm_addr(vBA)
    for i in range(3):
        g.vmop(f'buffer_load_ushort v{vB + 4 * i}, v{vBA}, {srd(SSM)}, s{sT3} offen offset:{128 * i}', 'bias')

    def f_stage_dma(s):
        dma_x(s, 2 * (s % 3))
        for j in range(3):
            dma_w1(f'st{s}', s, 2752, 128 * j, 6 + 3 * (s % 3) + j, vWA if j < 2 else vWA2)

    for s in range(3):
        f_stage_dma(s)
    g_loads()
    lane_consts()
    for i in range(3):
        for k in range(1, 4):
            e(f'v_mov_b32 v{vB + 4 * i + k}, 0')
    for k in range(4):
        e(f'v_mov_b32 v{vB + 12 + k}, 0x3f803f80')
    g.stamp(1)

    def f_reads(n):
        s, ks = n >> 2, n & 3
        buf = vF + 16 * (n & 1)
        e(f'ds_read_b128 {vr(buf, 4)}, v{vXR + ks} offset:{2 * (s % 3) * SLOT}')
        for j in range(3):
            for v in range(2):
                trd(buf + 4 + 4 * j, vT, 6 + 3 * (s % 3) + j, ks, v)

    g.vmwait('st0', 'lgkmcnt(0)')
    e('s_barrier')
    g.stamp(2)
    f_reads(0)
    for j in range(3):
        mfma(vA + 16 * j, vB + 4 * j, vB + 12, '0')
    after = {5: [15, 16, 17, 18, 4], 6: [5, 12, 13, 14, 0]}
    rest = [1, 6, 7, 8, 2, 3, 9, 10, 11]
    for n in range(32):
        s, ks = n >> 2, n & 3
        if n < 31:
            if ks == 3:
                g.vmwait(f'st{s + 1}', 'lgkmcnt(0)')
                e('s_barrier')
                if s + 3 < 8:
                    f_stage_dma(s + 3)
                else:
                    for st in after[s]:
                        dma_w2(st)
                f_reads(n + 1)
            else:
                f_reads(n + 1)
                e('s_waitcnt lgkmcnt(7)')
        else:
            e('s_waitcnt lgkmcnt(0)')
        buf = vF + 16 * (n & 1)
        for j in range(3):
            mfma(vA + 16 * j, buf + 4 + 4 * j, buf, vA + 16 * j)
    e('s_barrier')
    g.stamp(3)
    p2_bases()
    g_compute()
    K0 = -2.0 * 0.7978845608028654 * 1.4426950408889634
    K1 = K0 * 0.044715
    e(f's_mov_b32 s{sT2}, {hex(f2u(K1))}')
    e(f'v_mov_b32 v{vBA}, {hex(f2u(K0))}')
    vE = 80

    def gelu(j, dmas):
        A = vA + 16 * j
        dm = list(dmas)

        def tick():
            if dm:
                dma_w2(dm.pop(0))
        for i in range(16):
            e(f'v_mul_f32 v{vE + i}, v{A + i}, v{A + i}')
        tick()
        for i in range(16):
            e(f'v_fma_f32 v{vE + i}, v{vE + i}, s{sT2}, v{vBA}')
        for i in range(16):
            e(f'v_mul_f32 v{vE + i}, v{vE + i}, v{A + i}')
        tick()
        for i in range(16):
            e(f'v_exp_f32 v{vE + i}, v{vE + i}')
        tick()
        for i in range(16):
            e(f'v_add_f32 v{vE + i}, 1.0, v{vE + i}')
        tick()
        for i in range(16):
            e(f'v_rcp_f32 v{vE + i}, v{vE + i}')
        tick()
        for i in range(16):
            e(f'v_mul_f32 v{vE + i}, v{vE + i}, v{A + i}')
        while dm:
            tick()
        pack16(A, vE)
        e(f's_add_u32 s{sT0}, s{sACT}, {4096 * j}')
        if j == 2:
            e(f's_add_u32 s{sT0}, s{sT0}, s{sLAST}')
        g.vmop(f'buffer_store_dwordx4 {vr(A, 4)}, v{vL16}, {srd(SWS)}, s{sT0} offen sc1', 'ost')
        g.vmop(f'buffer_store_dwordx4 {vr(A + 4, 4)}, v{vL16}, {srd(SWS)}, s{sT0} offen offset:1024 sc1', 'ost')

    gelu(0, rest[:5])
    gelu(1, rest[5:])
    gelu(2, [])
    g.stamp(4)
    g.vmwait('w2_10')
    e('s_barrier')
    w2_move()
    g.stamp(5)
    g.vmwait(['ost', 'gst'])
    e('s_barrier')
    publish(p1flag_off)
    for st in range(19, 30):
        dma_w2(st)
    g.stamp(6)
    e('s_branch L_p2b')

    g.lab('L_p2')
    c('QKV workgroups publish o')
    g.vmall()
    e('s_barrier')
    publish(p1flag_off)
    g.lab('L_p2b')
    g.vm = []
    c('================ phase 2')
    g.stamp(9)
    vAB, vAA = 32, 64
    vH = 216
    NH = 10
    vWL = 96
    vB2 = 112
    vHA = 18
    vGV = 19
    a, b = vTmp + 1, vTmp + 2
    mksrd(SSM, 20, 1024)
    colperm_addr(vGV)
    e(f's_and_b32 s{sT2}, s{sW}, 3')
    e(f's_cmp_eq_u32 s{sT2}, 0')
    e(f's_cselect_b32 s{sT0}, 0, {OOB}')
    e(f's_add_u32 s{sT0}, s{sT0}, s{sW2O}')
    for i in range(2):
        e(f'buffer_load_ushort v{vB2 + 4 * i}, v{vGV}, {srd(SSM)}, s{sT0} offen offset:{64 * i}')
        for k in range(1, 4):
            e(f'v_mov_b32 v{vB2 + 4 * i + k}, 0')
    for k in range(4):
        e(f'v_mov_b32 v{vB2 + 8 + k}, 0x3f803f80')
    e(f's_lshl_b32 s{sT0}, s{sTT}, 1')
    e(f's_lshr_b32 s{sT1}, s{sW}, 2')
    e(f's_add_u32 s{sT0}, s{sT0}, s{sT1}')
    e(f's_lshl_b32 s{sACT}, s{sT0}, 7')
    e(f's_add_u32 s{sACT}, s{sACT}, {WS_G}')
    e(f's_mul_i32 s{sT0}, s{sT0}, {ACT_TB}')
    e(f's_lshl_b32 s{sT1}, s{sT2}, 10')
    e(f's_add_u32 s{sT0}, s{sT0}, s{sT1}')
    e(f'v_add_u32 v{vHA}, s{sT0}, v{vL16}')
    e(f's_cmp_ge_u32 s{sT2}, 2')
    e(f's_cselect_b32 s3, {OOB}, 0')
    e(f's_add_u32 s3, s3, {WS_ACT + 21 * 4096}')
    vFO = 20
    e(f'v_lshlrev_b32 v{vFO}, 7, v{vL}')

    def fl_off():
        e(f's_lshr_b32 s{sT1}, s{sTT}, 1')
        e(f's_lshl_b32 s{sT1}, s{sT1}, 11')
        e(f's_add_u32 s{sT1}, s{sT1}, {WS_FP1}')
    fl_off()
    poll(vFO, 0xcccc)
    g.stamp(10)

    def hload(st):
        r = vH + 4 * (st % NH)
        if st == 21:
            g.vmop(f'buffer_load_dwordx4 {vr(r, 4)}, v{vHA}, {srd(SWS)}, s3 offen sc1', f'h{st}')
        else:
            e(f's_mov_b32 s{sT0}, {WS_ACT + st * 4096}')
            g.vmop(f'buffer_load_dwordx4 {vr(r, 4)}, v{vHA}, {srd(SWS)}, s{sT0} offen sc1', f'h{st}')

    for st in range(NH):
        hload(st)
    e('s_barrier')
    for nb in range(2):
        mfma(vAB + 16 * nb, vB2 + 4 * nb, vB2 + 8, '0')
    nxt = NH
    for st in range(30):
        if st == 22:
            g.stamp(11)
            fl_off()
            poll(vFO, 0x3333)
            g.stamp(12)
            for k in range(22, 30):
                hload(k)
            e(f'v_and_b32 v{vTmp}, 31, v{vL}')
            e(f'v_lshlrev_b32 v{vTmp}, 2, v{vTmp}')
            g.vmop(f'buffer_load_dword v{vGV}, v{vTmp}, {srd(SWS)}, s{sACT} offen sc1', 'gv')
        if 11 <= st + 1 < 30:
            p2_wread(vWL + 8 * ((st + 1) & 1), st + 1)
        lg_ = ''
        if st >= 11:
            lg_ = 'lgkmcnt(4)' if st + 1 < 30 else 'lgkmcnt(0)'
        g.vmwait(f'h{st}', lg_)
        w = vWR + 8 * st if st < 11 else vWL + 8 * (st & 1)
        acc = vAB if st < 22 else vAA
        for nb in range(2):
            mfma(acc + 16 * nb, w + 4 * nb, vH + 4 * (st % NH), '0' if st == 22 else acc + 16 * nb)
        if nxt < 22:
            hload(nxt)
            nxt += 1
    g.stamp(13)
    lE = g.newlab('ep')
    e(f's_cmp_lg_u32 s2, 255')
    e(f's_cbranch_scc1 {lE}')
    e(f's_cmp_lg_u32 s{sW}, 7')
    e(f's_cbranch_scc1 {lE}')
    vm_save = list(g.vm)
    for k in range(4):
        e(f's_mov_b32 s{sT1}, {WS_FP1 + k * 8192}')
        poll(vFO, -1)
    e(f'v_mov_b32 v{vTmp}, s{sTAG}')
    e('s_mov_b64 exec, 1')
    e(f'buffer_store_dword v{vTmp}, v{vL16}, {srd(SWS)}, 0 offen sc1')
    e('s_mov_b64 exec, -1')
    g.lab(lE)
    g.vm = vm_save
    a, b, d = vTmp, vTmp + 1, vTmp + 2
    e(f'v_and_b32 v{a}, 31, v{vL}')
    e(f'v_and_b32 v{b}, 15, v{vL}')
    e(f'v_lshrrev_b32 v{d}, 5, v{vL}')
    e(f'v_lshlrev_b32 v{d}, 2, v{d}')
    e(f'v_xor_b32 v{b}, v{b}, v{d}')
    e(f'v_lshlrev_b32 v{b}, 4, v{b}')
    e(f'v_lshl_add_u32 v{a}, v{a}, 8, v{b}')
    e(f's_and_b32 s{sT0}, s{sW}, 3')
    e(f's_lshl_b32 s{sT0}, s{sT0}, 14')
    e(f's_lshr_b32 s{sT1}, s{sW}, 2')
    e(f's_lshl_b32 s{sT1}, s{sT1}, 13')
    e(f's_add_u32 s{sT0}, s{sT0}, s{sT1}')
    e(f's_add_u32 s{sT0}, s{sT0}, {11 * SLOT}')
    e(f'v_add_u32 v{a}, s{sT0}, v{a}')
    vWA8 = 96
    for q in range(8):
        e(f'v_xor_b32 v{vWA8 + q}, {16 * ((q >> 2) * 8 + (q & 3))}, v{a}')
    g.vmwait('gv')
    for i in range(32):
        e(f'v_sub_f32 v{vAA + i}, v{vAA + i}, v{vAB + i}')
    for i in range(32):
        e(f'v_fmac_f32 v{vAB + i}, v{vGV}, v{vAA + i}')
    e('s_barrier')
    for q in range(8):
        e(f'ds_write_b128 v{vWA8 + q}, {vr(vAB + 4 * q, 4)}')
    e(f'v_lshrrev_b32 v{a}, 3, v0')
    e(f'v_and_b32 v{b}, 7, v0')
    e(f'v_lshlrev_b32 v{d}, 4, v{b}')
    e(f'v_lshl_add_u32 v{vHA}, v{a}, 10, v{d}')
    e(f'v_lshlrev_b32 v{b}, 1, v{b}')
    e(f'v_and_b32 v{d}, 15, v{a}')
    e(f'v_xor_b32 v{b}, v{b}, v{d}')
    e(f'v_lshlrev_b32 v{b}, 4, v{b}')
    e(f'v_lshl_add_u32 v{a}, v{a}, 8, v{b}')
    e(f'v_add_u32 v{a}, {11 * SLOT}, v{a}')
    e(f'v_xor_b32 v{b}, 16, v{a}')
    e(f's_lshl_b32 s{sT0}, s{sTT}, 16')
    e(f's_add_u32 s{sT0}, s{sT0}, s{sW2O}')
    e('s_waitcnt lgkmcnt(0)')
    e('s_barrier')
    R = 32
    for k in range(4):
        e(f'ds_read_b128 {vr(R + 8 * k, 4)}, v{a} offset:{k * 16384}')
        e(f'ds_read_b128 {vr(R + 8 * k + 4, 4)}, v{b} offset:{k * 16384}')
    e('s_waitcnt lgkmcnt(4)')
    for i in range(8):
        e(f'v_add_f32 v{R + i}, v{R + i}, v{R + 8 + i}')
    e('s_waitcnt lgkmcnt(0)')
    for i in range(8):
        e(f'v_add_f32 v{R + 16 + i}, v{R + 16 + i}, v{R + 24 + i}')
    for i in range(8):
        e(f'v_add_f32 v{R + i}, v{R + i}, v{R + 16 + i}')
    for i in range(4):
        e(f'v_cvt_pk_bf16_f32 v{R + 8 + i}, v{R + 2 * i}, v{R + 2 * i + 1}')
    e(f'buffer_store_dwordx4 {vr(R + 8, 4)}, v{vHA}, {srd(SOUT)}, s{sT0} offen')
    if opt.get('stamps'):
        e('s_waitcnt vmcnt(0)')
        g.stamp(14)
        e('s_memrealtime s[98:99]')
        e('s_waitcnt lgkmcnt(0)')
        e('s_mov_b32 s97, s98')
        e(f's_lshl_b32 s{sT0}, s2, 3')
        e(f's_add_u32 s{sT0}, s{sT0}, s{sW}')
        e(f's_lshl_b32 s{sT0}, s{sT0}, 7')
        e(f's_add_u32 s{sT0}, s{sT0}, {WS_STAMP}')
        e('s_mov_b64 exec, 1')
        for i in range(18):
            e(f'v_mov_b32 v{vTmp}, s{80 + i}')
            e(f'buffer_store_dword v{vTmp}, v{vL16}, {srd(SWS)}, s{sT0} offen offset:{4 * i}')
        if opt.get('dbg'):
            e(f's_cmp_lg_u32 s2, {opt["dbg"]}')
            e('s_cbranch_scc1 L_end')
            e(f's_cmp_lg_u32 s{sW}, 0')
            e('s_cbranch_scc1 L_end')
            mksrd(SSM, 26, 256)
            e('s_sub_u32 s95, s97, s96')
            e('s_add_u32 s95, s95, s80')
            for i in range(16):
                e(f's_sub_u32 s{sT0}, s{80 + i}, s80')
                e(f'v_mov_b32 v{vTmp}, s{sT0}')
                e(f'buffer_store_dword v{vTmp}, v{vL16}, {srd(SSM)}, 0 offen offset:{4 * i}')
    g.lab('L_end')
    e('s_endpgm')
    return g.L


HEAD = open('cdna_kernels/' + NAME + '.s.ref').read().split('; Override')[0]


def spinner(opt):
    if opt.get('list') != 4:
        return ''
    A, B, C, sh = opt.get('sa', 17), opt.get('sb', 16), opt.get('sc', -1), opt.get('sh', 0)
    L = ['s_cmp_lg_u32 s2, 0', 's_cbranch_scc1 L_spe', 's_load_dwordx2 s[4:5], s[0:1], 96', 'v_lshlrev_b32 v1, 10, v0',
         f'v_add_u32 v1, {WS_STAMP}, v1', 'v_mov_b32 v4, 0', 'v_mov_b32 v5, -1', 's_waitcnt lgkmcnt(0)']
    for k in range(4):
        L += [f'global_load_dword v2, v1, s[4:5] offset:{4 * A}', f'global_load_dword v3, v1, s[4:5] offset:{4 * max(B, 0)}',
              f'global_load_dword v6, v1, s[4:5] offset:{4 * max(C, 0)}', 'v_add_u32 v1, 0x10000, v1', 's_waitcnt vmcnt(0)']
        if C >= 0:
            L += ['v_sub_u32 v2, v2, v6']
        if not (opt.get('half') == 1 and k >= 2) and not (opt.get('half') == 2 and k < 2):
            L += ['v_max_u32 v4, v4, v2', 'v_min_u32 v5, v5, v3']
    L += ['s_mov_b32 s6, 0', 's_mov_b32 s7, -1', 's_nop 4']
    for i in range(64):
        L += [f'v_readlane_b32 s8, v4, {i}', f'v_readlane_b32 s9, v5, {i}', 's_nop 1', 's_max_u32 s6, s6, s8', 's_min_u32 s7, s7, s9']
    if B >= 0:
        L += ['s_sub_u32 s6, s6, s7']
    L += [f's_lshr_b32 s6, s6, {sh}', f's_mul_i32 s6, s6, {opt.get("mul", 1)}', 's_min_u32 s6, s6, 20000', 's_memrealtime s[8:9]', 's_waitcnt lgkmcnt(0)', 'L_spl:',
          's_memrealtime s[10:11]', 's_waitcnt lgkmcnt(0)', 's_sub_u32 s10, s10, s8', 's_cmp_lt_u32 s10, s6', 's_cbranch_scc1 L_spl', 'L_spe:']
    return ''.join('  ' + x + '\n' for x in L)


def emit(opt):
    body = build(opt)
    s = HEAD
    main = f'; @launch kernel={NAME}_kernel grid=(256,1,1) block=(512,1,1) lds={LDS_BYTES}\n'
    emp = '; @launch kernel=empty_kernel grid=(256,1,1) block=(64,1,1) lds=0\n'
    if opt.get('list') == 1:
        s += main + emp
    elif opt.get('list') == 2:
        s += emp + main
    elif opt.get('list') == 3:
        s += main + main
    elif opt.get('list') == 4:
        s += main + '; @launch kernel=empty_kernel grid=(1,1,1) block=(64,1,1) lds=0\n'
    else:
        s += f'; @launch grid=(256,1,1) block=(512,1,1) lds={LDS_BYTES}\n'
    s += '.amdgcn_target "amdgcn-amd-amdhsa--gfx950"\n.text\n'
    s += f'.globl {NAME}_kernel\n.p2align 8\n.type {NAME}_kernel,@function\n{NAME}_kernel:\n'
    s += '\n'.join(body) + '\n'
    s += '; padding so that the code prefetch stays inside the section\n.fill 8192, 4, 0xbf800000\n'
    s += f'''.section .rodata,"a"
.p2align 6
.amdhsa_kernel {NAME}_kernel
  .amdhsa_next_free_vgpr 256
  .amdhsa_next_free_sgpr 102
  .amdhsa_accum_offset 256
  .amdhsa_group_segment_fixed_size 0
  .amdhsa_kernarg_size 104
  .amdhsa_user_sgpr_count 2
  .amdhsa_user_sgpr_kernarg_segment_ptr 1
  .amdhsa_system_sgpr_workgroup_id_x 1
.end_amdhsa_kernel
'''
    if opt.get('list') in (1, 2, 4):
        s += '''.text
.globl empty_kernel
.p2align 8
.type empty_kernel,@function
empty_kernel:
''' + spinner(opt) + '''  s_endpgm
.section .rodata,"a"
.p2align 6
.amdhsa_kernel empty_kernel
  .amdhsa_next_free_vgpr 8
  .amdhsa_next_free_sgpr 16
  .amdhsa_accum_offset 8
  .amdhsa_group_segment_fixed_size 0
  .amdhsa_kernarg_size 104
  .amdhsa_user_sgpr_count 2
  .amdhsa_user_sgpr_kernarg_segment_ptr 1
  .amdhsa_system_sgpr_workgroup_id_x 1
.end_amdhsa_kernel
'''
    return s


if __name__ == '__main__':
    out = sys.argv[1]
    opt = {}
    for a in sys.argv[2:]:
        k, v = a.split('=')
        opt[k] = int(v)
    open(out, 'w').write(emit(opt))
```

```python
import sys

NAME = 'gated_mix__linear_kernel_hedgehog__dense_activation_gelu__prompt'

WS_E = 0
WS_FP1 = 0x1000
WS_FKV = 0x10000
WS_G = 0x20000
WS_KVP = 0x40000
KVP_SZ = 4352
WS_ACT = 0x100000
ACT_TB = 120 * 1024
WS_STAMP = 0x1000000
WS_SIZE = 0x2000000
OOB = 0x70000000

SLOT = 8192
MISC = 19 * SLOT
L_WPHI = MISC
L_ZS = MISC + 2048
L_TAB = MISC
LDS_BYTES = 163840

LOG2E = 0x3fb8aa3b


def f2u(x):
    import struct
    return struct.unpack('<I', struct.pack('<f', x))[0]


class Gen:
    def __init__(self, opt):
        self.o = opt
        self.L = []
        self.vm = []
        self.lg = []
        self.nlab = 0
        self.cap = None
        self.who = False

    def e(self, s):
        if self.cap is not None:
            self.cap.append([('e', s)])
        else:
            self.L.append('  ' + s)

    def c(self, s):
        self.L.append('  ; ' + s)

    def lab(self, s):
        assert self.cap is None
        self.L.append(s + ':')

    def newlab(self, p):
        self.nlab += 1
        return f'L_{p}{self.nlab}'

    def vmop(self, s, tag, cond=False):
        if self.cap is not None:
            self.cap.append([('vm', s, tag, cond)])
        else:
            self.L.append('  ' + s)
            self.vm.append((tag, cond if cond else self.who))

    def ds(self, s, tag):
        if self.cap is not None:
            self.cap.append([('ds', s, tag)])
        else:
            self.L.append('  ' + s)
            self.lg.append(tag)

    def wait(self, vm=None, lg=None):
        if self.cap is not None:
            self.cap.append([('wait', vm, lg)])
            return
        parts = []
        halves = self.who if self.who else 'oy'
        n = None
        if vm == 'all':
            n = 0
        elif vm is not None:
            tags = [vm] if isinstance(vm, str) else vm
            ns = []
            for half in halves:
                seq = [(t, cnd) for (t, cnd) in self.vm if cnd in (False, True, half)]
                last = max([i for i, (t, cnd) in enumerate(seq) if t in tags], default=-1)
                if last >= 0:
                    ns.append(sum(1 for (t, cnd) in seq[last + 1:] if cnd is not True))
            if ns:
                n = min(ns)
        if n is not None:
            assert n <= 63
            parts.append(f'vmcnt({n})')
            keep = set()
            for half in halves:
                k = 0
                for i in range(len(self.vm) - 1, -1, -1):
                    cnd = self.vm[i][1]
                    if cnd in (False, True, half):
                        if k >= n:
                            break
                        keep.add(i)
                        if cnd is not True:
                            k += 1
            if self.who:
                other = 'y' if self.who == 'o' else 'o'
                self.vm = [x if i in keep or x[1] in (True, other) else (x[0], other)
                           for i, x in enumerate(self.vm) if i in keep or x[1] != self.who]
            else:
                self.vm = [x for i, x in enumerate(self.vm) if i in keep]
        if lg == 'all':
            parts.append('lgkmcnt(0)')
            self.lg = []
        elif lg is not None:
            tags = [lg] if isinstance(lg, str) else lg
            last = max([i for i, t in enumerate(self.lg) if t in tags], default=-1)
            if last >= 0:
                n = min(len(self.lg) - last - 1, 15)
                parts.append(f'lgkmcnt({n})')
                self.lg = self.lg[len(self.lg) - n:] if n else []
        if parts:
            self.L.append('  s_waitcnt ' + ' '.join(parts))

    def capture(self, fn, atomic=False):
        old, self.cap = self.cap, []
        fn()
        q, self.cap = self.cap, old
        if atomic:
            q = [[x for grp in q for x in grp]]
        return q

    def atomic(self, fn):
        if self.cap is None:
            fn()
        else:
            self.cap += self.capture(fn, atomic=True)

    def play(self, q, k=None):
        k = len(q) if k is None else min(k, len(q))
        for _ in range(k):
            for x in q.pop(0):
                if x[0] == 'e':
                    self.e(x[1])
                elif x[0] == 'vm':
                    self.vmop(x[1], x[2], x[3])
                elif x[0] == 'ds':
                    self.ds(x[1], x[2])
                else:
                    self.wait(x[1], x[2])

    def weave(self, main, *fills):
        n = len(main)
        tot = [len(f) for f in fills]
        for i in range(n):
            self.play(main, 1)
            for f, t in zip(fills, tot):
                self.play(f, (i + 1) * t // n - i * t // n)

    def half(self, who, fn):
        l = self.newlab('half')
        self.e('s_cmp_gt_u32 s60, 3')
        self.e(f's_cbranch_scc{1 if who == "o" else 0} {l}')
        self.who = who
        fn()
        self.who = False
        self.lab(l)

    def nop(self, n):
        while n > 0:
            k = min(n, 16)
            self.e(f's_nop {k - 1}')
            n -= k

    def stamp(self, i):
        if not self.o.get('stamps') or (self.o.get('stamps') == 2 and i != 14):
            return
        self.e('s_memtime s[98:99]')
        self.wait(lg='all')
        self.e(f's_mov_b32 s{80 + i}, s98')


def vr(a, n=1):
    return f'v{a}' if n == 1 else f'v[{a}:{a + n - 1}]'


SX, SW1, SW2, SWO, SWS, SOUT, SSM = 32, 36, 40, 44, 48, 52, 56
sW, sTG, sGRP, sCGI, sTT, sD, sW1K, sW2K = 60, 61, 62, 63, 64, 65, 66, 67
sTAG = 68
sXO = 70
sWO_ = 71
sT0, sT1, sT2, sT3 = 72, 73, 74, 75
sVAL = 76
sC = 78
sCNT = 79
sW2O = 30
sACT = 31
sFL = 12
sK1 = 13
XS = {2: 7, 0: 9, 1: 11}
XBASE = 7 * SLOT


def srd(r):
    return f's[{r}:{r + 3}]'


def build(opt):
    g = Gen(opt)
    e, c = g.e, g.c

    vL = 1
    vXA0, vXA1, vWA, vWA2, vW2A = 2, 3, 4, 5, 6
    vL16 = 7
    vXR = 8
    vT = 12
    vHA = 18
    vM = 19
    vTmp = 28
    vPR = 26
    vFO = 8
    vU = 9
    vWR = 128
    ta, tb_, td = vTmp, vTmp + 1, vTmp + 2

    def mksrd(r, lo, size):
        e(f's_mov_b32 s{r}, s{lo}')
        e(f's_mov_b32 s{r + 1}, s{lo + 1}')
        e(f's_mov_b32 s{r + 2}, {size}')
        e(f's_mov_b32 s{r + 3}, 0x20000')

    def dma_x(stage):
        def first():
            e(f's_add_u32 m0, s{sW2K}, {XS[stage % 3] * SLOT}')
            e(f's_add_u32 s{sD}, s{sXO}, {stage * 128}')
            g.vmop(f'buffer_load_dwordx4 v{vXA0}, {srd(SX)}, s{sD} offen lds', f'st{stage}')
        g.atomic(first)
        g.vmop(f'buffer_load_dwordx4 v{vXA1}, {srd(SX)}, s{sD} offen offset:1024 lds', f'st{stage}')

    def dma_w1(tag, stage, pitch, coloff, slot, va):
        def f():
            e(f's_add_u32 m0, s{sW1K}, {slot * SLOT}')
            e(f's_add_u32 s{sD}, s{sWO_}, {stage * 64 * pitch + coloff}')
            g.vmop(f'buffer_load_dwordx4 v{va}, {srd(SW1)}, s{sD} offen lds', tag)
        g.atomic(f)

    def w2slot(st):
        return st if st < 19 else st - 19

    def dma_w2(st):
        def f():
            e(f's_add_u32 m0, s{sW1K}, {w2slot(st) * SLOT}')
            e(f's_add_u32 s{sD}, s{sW2O}, {(st if st < 22 else st - 22) * 65536}')
            g.vmop(f'buffer_load_dwordx4 v{vW2A}, {srd(SW2 if st < 22 else SWO)}, s{sD} offen lds', f'w2_{st}')
        g.atomic(f)

    def w2q(sts):
        return g.capture(lambda: [dma_w2(st) for st in sts])

    e('s_cmp_ge_u32 s2, 256')
    e('s_cbranch_scc1 L_end')
    e('s_load_dwordx16 s[4:19], s[0:1], 0')
    e('s_load_dwordx8 s[20:27], s[0:1], 64')
    e('s_load_dwordx2 s[28:29], s[0:1], 96')
    if opt.get('stamps'):
        e('s_memrealtime s[96:97]')
        e('s_memtime s[98:99]')
    e(f'v_lshrrev_b32 v{ta}, 6, v0')
    e(f's_lshr_b32 s{sT1}, s2, 3')
    if opt.get('ctouch', 1):
        e(f's_getpc_b64 s[{sT2}:{sT3}]')
        e(f's_lshl_b32 s{sT0}, s{sT1}, 10')
        e(f'v_lshl_add_u32 v{tb_}, v{ta}, 7, s{sT0}')
        g.vmop(f'global_load_dword v{vTmp + 3}, v{tb_}, s[{sT2}:{sT3}]', 'touch')
    e(f'v_and_b32 v{vL}, 63, v0')
    e(f'v_readfirstlane_b32 s{sW}, v{ta}')
    e(f's_and_b32 s{sT0}, s2, 7')
    e(f's_and_b32 s{sTG}, s{sT0}, 1')
    e(f's_lshl_b32 s{sTG}, s{sTG}, 3')
    e(f's_and_b32 s{sT2}, s{sT1}, 7')
    e(f's_add_u32 s{sTG}, s{sTG}, s{sT2}')
    e(f's_lshr_b32 s{sT3}, s{sT1}, 3')
    e(f's_and_b32 s{sGRP}, s{sT0}, 6')
    e(f's_lshl_b32 s{sCGI}, s{sGRP}, 1')
    e(f's_add_u32 s{sCGI}, s{sCGI}, s{sT3}')
    e(f's_and_b32 s{sT3}, s{sT3}, 1')
    e(f's_add_u32 s{sGRP}, s{sGRP}, s{sT3}')
    e(f's_lshl_b32 s{sW1K}, s{sW}, 10')
    e(f's_lshl_b32 s{sW2K}, s{sW}, 11')
    e(f's_lshl_b32 s{sXO}, s{sTG}, 17')
    e(f'v_lshrrev_b32 v{ta}, 3, v{vL}')
    e(f'v_lshrrev_b32 v{tb_}, 4, v{vL}')
    e(f'v_and_b32 v{vWA2}, 7, v{vL}')
    e(f'v_xor_b32 v{vXA0}, v{vWA2}, v{tb_}')
    e(f'v_lshlrev_b32 v{vXA0}, 4, v{vXA0}')
    e(f'v_lshl_add_u32 v{vXA0}, v{ta}, 10, v{vXA0}')
    e(f's_lshl_b32 s{sT2}, s{sW}, 14')
    e(f'v_add_u32 v{vXA0}, s{sT2}, v{vXA0}')
    e(f'v_xor_b32 v{vXA1}, 64, v{vXA0}')
    e(f'v_add_u32 v{vXA1}, {8192 - 1024}, v{vXA1}')
    e(f'v_and_b32 v{tb_}, 1, v{tb_}')
    e(f'v_lshlrev_b32 v{tb_}, 2, v{tb_}')
    e(f'v_xor_b32 v{vWA2}, v{vWA2}, v{tb_}')
    e(f'v_lshlrev_b32 v{vWA2}, 4, v{vWA2}')
    e(f'v_lshrrev_b32 v{ta}, 3, v0')
    e(f'v_lshl_add_u32 v{vW2A}, v{ta}, 10, v{vWA2}')
    e(f'v_lshlrev_b32 v{vL16}, 4, v{vL}')
    e(f's_mov_b32 s{SX + 2}, {2048 * 1024}')
    e(f's_mov_b32 s{SX + 3}, 0x20000')
    e(f's_mov_b32 s{SW1 + 3}, 0x20000')
    e('s_waitcnt lgkmcnt(0)')
    if opt.get('stamps'):
        e('s_mov_b32 s80, s98')
    e(f's_mov_b32 s{SX}, s4')
    e(f's_mov_b32 s{SX + 1}, s5')
    dma_x(0)
    e(f's_load_dword s{sTAG}, s[28:29], {WS_E}')
    e(f's_bitcmp1_b32 s{sCGI}, 1')
    e('s_cbranch_scc0 L_qkv')
    vm_common = list(g.vm)

    FW = {2: 4, 0: 13, 1: 16}
    QW = {2: 4, 0: 0, 1: 2}

    def f_stage_w(s):
        for j in range(3):
            dma_w1(f'st{s}', s, 2752, 128 * j, FW[s % 3] + j, vWA if j < 2 else vWA2)

    def q_stage_w(s):
        dma_w1(f'st{s}', s, 3072, 1024, QW[s % 3], vWA)
        dma_w1(f'st{s}', s, 3072, 2048, QW[s % 3] + 1, vWA)

    e(f's_mov_b32 s{SW1}, s14')
    e(f's_mov_b32 s{SW1 + 1}, s15')
    e(f's_mov_b32 s{SW1 + 2}, {512 * 2752}')
    e(f's_movk_i32 s{sT2}, 2752')
    e(f'v_mad_u32_u24 v{vWA}, v{ta}, s{sT2}, v{vWA2}')
    e(f's_mul_i32 s{sT2}, s{sGRP}, 43')
    e(f's_add_u32 s{sT3}, s{sT2}, 50')
    e(f's_add_u32 s{sT2}, s{sT2}, 7')
    e(f's_lshr_b32 s{sT2}, s{sT2}, 3')
    e(f's_lshr_b32 s{sT3}, s{sT3}, 3')
    e(f's_sub_u32 s{sT3}, s{sT3}, s{sT2}')
    e(f's_lshl_b32 s{sWO_}, s{sT2}, 6')
    e(f'v_cmp_lt_u32 vcc, 63, v{vWA2}')
    e(f's_cmp_eq_u32 s{sT3}, 5')
    e(f's_cselect_b32 s3, {OOB}, 0')
    e(f'v_mov_b32 v{tb_}, s3')
    e(f'v_cndmask_b32 v{tb_}, 0, v{tb_}, vcc')
    e(f'v_add_u32 v{vWA2}, v{vWA}, v{tb_}')
    f_stage_w(0)
    e('s_branch L_ffn')
    vm_ffn = list(g.vm)

    def setup_common():
        e(f's_lshl_b32 s{sTT}, s{sT0}, 2')
        e(f's_lshr_b32 s{sT2}, s{sT1}, 3')
        e(f's_add_u32 s{sTT}, s{sTT}, s{sT2}')
        e(f's_and_b32 s{sT2}, s{sT1}, 1')
        e(f's_lshl_b32 s{sT2}, s{sT2}, 1')
        e(f's_xor_b32 s{sTT}, s{sTT}, s{sT2}')
        e(f's_and_b32 s{sW2O}, s{sT1}, 7')
        e(f's_lshl_b32 s{sW2O}, s{sW2O}, 7')
        e(f's_mov_b32 s{sC}, {hex(LOG2E)}')
        mksrd(SW2, 18, 1376 * 1024)
        mksrd(SWO, 10, 512 * 1024)
        mksrd(SWS, 28, WS_SIZE)
        mksrd(SOUT, 24, 2048 * 1024)
        a, b, d = ta, tb_, td
        e(f'v_and_b32 v{a}, 31, v{vL}')
        e(f'v_bfe_u32 v{b}, v{vL}, 1, 3')
        e(f'v_lshrrev_b32 v{d}, 5, v{vL}')
        e(f'v_lshlrev_b32 v{d}, 1, v{d}')
        e(f'v_xor_b32 v{b}, v{b}, v{d}')
        e(f'v_lshlrev_b32 v{b}, 4, v{b}')
        e(f'v_lshl_add_u32 v{b}, v{a}, 7, v{b}')
        e(f's_and_b32 s{sT0}, s{sW}, 3')
        e(f's_lshl_b32 s{sT0}, s{sT0}, 12')
        e(f's_add_u32 s{sT0}, s{sT0}, {XBASE}')
        e(f'v_add_u32 v{vXR}, s{sT0}, v{b}')
        e(f'v_xor_b32 v{vXR + 1}, 16, v{vXR}')
        e(f'v_xor_b32 v{vXR + 2}, 64, v{vXR}')
        e(f'v_xor_b32 v{vXR + 3}, 0x50, v{vXR}')
        e(f'v_and_b32 v{a}, 3, v{vL}')
        e(f'v_lshlrev_b32 v{a}, 3, v{a}')
        e(f'v_bfe_u32 v{b}, v{vL}, 4, 1')
        e(f'v_lshl_add_u32 v{a}, v{b}, 5, v{a}')
        e(f'v_bfe_u32 v{b}, v{vL}, 3, 1')
        e(f'v_lshl_add_u32 v{a}, v{b}, 6, v{a}')
        e(f'v_bfe_u32 v{b}, v{vL}, 2, 2')
        e(f'v_lshl_add_u32 v{a}, v{b}, 7, v{a}')
        e(f'v_lshrrev_b32 v{b}, 5, v{vL}')
        e(f'v_lshl_add_u32 v{vT + 3}, v{b}, 9, v{a}')
        e(f'v_lshl_add_u32 v{a}, v{b}, 11, v{a}')
        e(f's_lshr_b32 s{sT0}, s{sW}, 2')
        e(f's_lshl_b32 s{sT0}, s{sT0}, 6')
        e(f'v_xor_b32 v{vT}, s{sT0}, v{a}')
        e(f'v_add_u32 v{vT + 1}, 0x10000, v{vT}')
        e(f'v_add_u32 v{vT + 2}, 0x20000, v{vT}')
        e(f's_lshl_b32 s{sT0}, s{sTT}, 1')
        e(f's_lshr_b32 s{sT1}, s{sW}, 2')
        e(f's_add_u32 s{sT0}, s{sT0}, s{sT1}')
        e(f's_mul_i32 s{sT0}, s{sT0}, {ACT_TB}')
        e(f's_and_b32 s{sT1}, s{sW1K}, 0xc00')
        e(f's_add_u32 s{sT0}, s{sT0}, s{sT1}')
        e(f'v_add_u32 v{vHA}, s{sT0}, v{vL16}')

    def make_tag():
        e(f's_mul_i32 s{sTAG}, s{sTAG}, 1664525')
        e(f's_add_u32 s{sTAG}, s{sTAG}, 1013904223')
        e(f's_xor_b32 s{sTAG + 1}, s{sTAG}, 0x9e3779b9')

    def trd(dst, base, slot, ks, v, tag):
        off = slot * SLOT + ((32 * (ks >> 1) + 8 * (ks & 1) + 4 * v) * 128 if ks is not None else 1024 * v)
        g.ds(f'ds_read_b64_tr_b16 {vr(dst + 2 * v, 2)}, v{base + (off >> 16)} offset:{off & 0xffff}', tag)

    def mfma(d, a, b, cc):
        e(f'v_mfma_f32_32x32x16_bf16 {vr(d, 16)}, {vr(a, 4)}, {vr(b, 4)}, {cc if isinstance(cc, str) else vr(cc, 16)}')

    def mainloop(nW, xreg, wreg, wslot, mm, dmaq, fills):
        def reads(n, j):
            s, ks = n >> 2, n & 3
            if j == 0:
                g.ds(f'ds_read_b128 {vr(xreg(n), 4)}, v{vXR + ks} offset:{XS[s % 3] * SLOT - XBASE}', f'r{n}_0')
            for v in range(2):
                trd(wreg(n, j), vT, wslot(s) + j, ks, v, f'r{n}_{j}')
        for j in range(nW):
            reads(0, j)
        cur, left, tot, done = dmaq[0], 3 * nW, len(dmaq[0]), 0
        span = left
        for n in range(32):
            s, ks = n >> 2, n & 3
            fq = fills.get(n, [])
            nf = len(fq)
            for j in range(nW):
                g.wait(lg=f'r{n}_{j}')
                mm(n, j)
                if ks == 3 and j == 0:
                    assert not cur
                    g.wait(vm=f'st{s + 1}', lg='all')
                    e('s_barrier')
                    cur = dmaq[s + 1] if s + 1 < 8 else []
                    tot, done, span, left = len(cur), 0, 4 * nW, 4 * nW
                if n < 31:
                    reads(n + 1, j)
                if left:
                    left -= 1
                    k = -(-(span - left) * tot // span) - done
                    g.play(cur, k)
                    done += k
                g.play(fq, (j + 1) * nf // nW - j * nf // nW)

    def publish():
        l = g.newlab('pub')
        e(f's_cmp_lg_u32 s{sW}, 0')
        e(f's_cbranch_scc1 {l}')
        e(f'v_mov_b32 v{vPR}, s{sTAG}')
        e(f'v_mov_b32 v{vPR + 1}, s{sTAG + 1}')
        e('s_mov_b64 exec, 1')
        g.vmop(f'buffer_store_dwordx2 {vr(vPR, 2)}, v{vL16}, {srd(SWS)}, s{sT1} offen sc1', 'flag', cond=True)
        e('s_mov_b64 exec, -1')
        g.lab(l)

    def p1flag_off():
        e(f's_lshl_b32 s{sT1}, s{sTG}, 4')
        e(f's_add_u32 s{sT1}, s{sT1}, s{sCGI}')
        e(f's_lshl_b32 s{sT1}, s{sT1}, 7')
        e(f's_add_u32 s{sT1}, s{sT1}, {WS_FP1}')

    def xm(mask):
        return '-1' if mask == -1 else hex(mask)

    def probe(mask, cond=False):
        def f():
            e(f's_mov_b64 exec, {xm(mask)}')
            g.vmop(f'buffer_load_dwordx2 {vr(vPR, 2)}, v{vFO}, {srd(SWS)}, s{sFL} offen sc1', 'probe', cond)
            e('s_mov_b64 exec, -1')
        g.atomic(f)

    def check(mask):
        l, x = g.newlab('poll'), g.newlab('pollx')
        e(f's_mov_b32 s{sCNT}, 0')
        e(f's_mov_b64 exec, {xm(mask)}')
        g.wait(vm='probe')
        g.lab(l)
        e(f'v_cmp_ne_u64 vcc, s[{sTAG}:{sTAG + 1}], {vr(vPR, 2)}')
        e(f's_cbranch_vccz {x}')
        e(f'buffer_load_dwordx2 {vr(vPR, 2)}, v{vFO}, {srd(SWS)}, s{sFL} offen sc1')
        e(f's_add_u32 s{sCNT}, s{sCNT}, 1')
        e(f's_cmp_lt_u32 s{sCNT}, 0x40000')
        e('s_waitcnt vmcnt(0)')
        e(f's_cbranch_scc1 {l}')
        g.lab(x)
        e('s_mov_b64 exec, -1')

    def softmax(P, O, t):
        e(f'v_max3_f32 v{t}, v{P}, v{P + 1}, v{P + 2}')
        e(f'v_max3_f32 v{t + 1}, v{P + 3}, v{P + 4}, v{P + 5}')
        for i in range(6, 16, 2):
            k = t + ((i >> 1) & 1)
            e(f'v_max3_f32 v{k}, v{k}, v{P + i}, v{P + i + 1}')
        e(f'v_max_f32 v{t}, v{t}, v{t + 1}')
        e(f'v_mul_f32 v{t}, s{sC}, v{t}')
        for i in range(0, 16, 2):
            e(f'v_pk_fma_f32 {vr(P + i, 2)}, {vr(P + i, 2)}, s[{sC}:{sC + 1}], {vr(t, 2)} op_sel_hi:[1,0,0] neg_lo:[0,0,1] neg_hi:[0,0,1]')
        for i in range(16):
            e(f'v_exp_f32 v{P + i}, v{P + i}')
            if i == 5:
                e(f'v_pk_add_f32 {vr(t, 2)}, {vr(P, 2)}, {vr(P + 2, 2)}')
            if i > 5 and i & 1:
                e(f'v_pk_add_f32 {vr(t, 2)}, {vr(t, 2)}, {vr(P + i - 3, 2)}')
        e(f'v_pk_add_f32 {vr(t, 2)}, {vr(t, 2)}, {vr(P + 14, 2)}')
        e(f'v_add_f32 v{t}, v{t}, v{t + 1}')
        e(f'v_rcp_f32 v{t}, v{t}')
        g.nop(1)
        for i in range(0, 16, 2):
            e(f'v_pk_mul_f32 {vr(P + i, 2)}, {vr(P + i, 2)}, {vr(t, 2)} op_sel_hi:[1,0]')
        for i in range(8):
            e(f'v_cvt_pk_bf16_f32 v{O + i}, v{P + 2 * i}, v{P + 2 * i + 1}')

    def pack16(dst, src):
        for i in range(8):
            e(f'v_cvt_pk_bf16_f32 v{dst + i}, v{src + 2 * i}, v{src + 2 * i + 1}')

    def p2_bases():
        e(f's_and_b32 s{sT0}, s{sW2K}, 0x1800')
        e('s_nop 1')
        e(f'v_add_u32 v{vT + 3}, s{sT0}, v{vT + 3}')
        e(f'v_add_u32 v{vT + 4}, 0x10000, v{vT + 3}')
        e(f'v_add_u32 v{vT + 5}, 0x20000, v{vT + 3}')
        e(f'v_xor_b32 v{vU}, 64, v{vT + 3}')
        e(f'v_add_u32 v{vU + 1}, 0x10000, v{vU}')
        e(f'v_add_u32 v{vU + 2}, 0x20000, v{vU}')
        e(f'v_lshlrev_b32 v{vFO}, 7, v{vL}')

    def p2_wread(dst, st):
        for nb in range(2):
            for v in range(2):
                trd(dst + 4 * nb, vU if nb else vT + 3, w2slot(st), None, v, f'w{st}')

    def w2_move():
        for st in range(11):
            p2_wread(vWR + 8 * st, st)

    def colperm_addr(dst):
        e(f'v_lshrrev_b32 v{td}, 5, v{vL}')
        e(f'v_lshlrev_b32 v{td}, 28, v{td}')
        e(f'v_lshl_add_u32 v{dst}, v{vL}, 1, v{td}')

    vAB, vAA = 32, 64
    vH = 216
    NH = 10
    vWL = 96
    vB2 = 112
    vCP = 25

    def fl_p1():
        e(f's_lshr_b32 s{sFL}, s{sTT}, 1')
        e(f's_lshl_b32 s{sFL}, s{sFL}, 11')
        e(f's_add_u32 s{sFL}, s{sFL}, {WS_FP1}')

    def p2_bias():
        mksrd(SSM, 20, 1024)
        e(f's_and_b32 s{sT2}, s{sW}, 3')
        e(f's_cselect_b32 s{sT0}, {OOB}, 0')
        e(f's_add_u32 s{sT0}, s{sT0}, s{sW2O}')
        for i in range(2):
            g.vmop(f'buffer_load_ushort v{vB2 + 4 * i}, v{vCP}, {srd(SSM)}, s{sT0} offen offset:{64 * i}', 'b2')
            for k in range(1, 4):
                e(f'v_mov_b32 v{vB2 + 4 * i + k}, 0')
        for k in range(4):
            e(f'v_mov_b32 v{vB2 + 8 + k}, 0x3f803f80')
        e(f's_cmp_ge_u32 s{sT2}, 2')
        e(f's_cselect_b32 s3, {OOB}, 0')
        e(f's_add_u32 s3, s3, {WS_ACT + 21 * 4096}')

    def hreg(st):
        return vH + 4 * (st % NH) if st < 22 else vWR + 4 * (st - 22)

    def hload(st):
        if st == 21:
            g.vmop(f'buffer_load_dwordx4 {vr(hreg(st), 4)}, v{vHA}, {srd(SWS)}, s3 offen sc1', f'h{st}')
        else:
            e(f's_mov_b32 s{sD}, {WS_ACT + st * 4096}')
            g.vmop(f'buffer_load_dwordx4 {vr(hreg(st), 4)}, v{vHA}, {srd(SWS)}, s{sD} offen sc1', f'h{st}')

    g.lab('L_qkv')
    g.vm = list(vm_common)
    c('================ QKV workgroup')
    vX = 128
    vAK, vAV = 32, 48
    vF = 64
    vSEL, vAPHI = 80, 88
    vSA, vZS = 20, 24
    e(f's_mov_b32 s{SW1}, s6')
    e(f's_mov_b32 s{SW1 + 1}, s7')
    e(f's_mov_b32 s{SW1 + 2}, {512 * 3072}')
    e(f's_movk_i32 s{sT2}, 3072')
    e(f'v_mad_u32_u24 v{vWA}, v{ta}, s{sT2}, v{vWA2}')
    e(f's_lshl_b32 s{sWO_}, s{sGRP}, 7')
    q_stage_w(0)
    l = g.newlab('wphi')
    e(f's_cmp_gt_u32 s{sW}, 1')
    e(f's_cbranch_scc1 {l}')
    mksrd(SSM, 8, 32 * 512)
    e(f's_add_u32 m0, s{sW1K}, {L_WPHI}')
    e(f's_lshl_b32 s{sT2}, s{sGRP}, 11')
    e(f's_add_u32 s{sT2}, s{sT2}, s{sW1K}')
    g.vmop(f'buffer_load_dwordx4 v{vL16}, {srd(SSM)}, s{sT2} offen lds', 'st0', cond=True)
    g.lab(l)
    setup_common()
    dma_x(1)
    q_stage_w(1)
    g.stamp(1)
    g.wait(vm='st0', lg='all')
    e('s_barrier')
    g.stamp(2)

    def q_consts():
        a, b, d = ta, tb_, td
        make_tag()
        e(f'v_bfe_u32 v{a}, v{vL}, 2, 2')
        e(f'v_lshlrev_b32 v{a}, 5, v{a}')
        e(f'v_bfe_u32 v{b}, v{vL}, 4, 1')
        e(f'v_lshl_add_u32 v{a}, v{b}, 4, v{a}')
        e(f'v_bfe_u32 v{b}, v{vL}, 1, 1')
        e(f'v_lshl_add_u32 v{a}, v{b}, 3, v{a}')
        e(f'v_lshrrev_b32 v{b}, 5, v{vL}')
        e(f'v_lshl_add_u32 v{a}, v{b}, 7, v{a}')
        e(f's_lshr_b32 s{sT0}, s{sW}, 2')
        e(f's_lshl_b32 s{sT0}, s{sT0}, 10')
        e(f's_add_u32 s{sT0}, s{sT0}, {L_WPHI}')
        e(f'v_add_u32 v{a}, s{sT0}, v{a}')
        for h in range(2):
            for v in range(2):
                g.ds(f'ds_read_b64_tr_b16 {vr(vAPHI + 4 * h + 2 * v, 2)}, v{a} offset:{512 * h + 256 * v}', 'aphi')
        e(f'v_bfe_u32 v{a}, v{vL}, 2, 1')
        e(f'v_cmp_eq_u32 s[{sVAL}:{sVAL + 1}], v{a}, v{b}')
        e(f'v_mul_u32_u24 v{vZS}, 0x8000, v{a}')
        e(f'v_lshl_add_u32 v{vZS}, v{vZS}, 16, v{vZS}')
        e(f'v_bfe_u32 v{a}, v{vL}, 3, 2')
        e(f'v_lshlrev_b32 v{a}, 1, v{a}')
        e(f'v_bfe_u32 v{b}, v{vL}, 1, 1')
        e(f'v_add_u32 v{a}, v{a}, v{b}')
        e(f'v_and_b32 v{b}, 1, v{vL}')
        e(f'v_lshlrev_b32 v{b}, 4, v{b}')
        e(f'v_mov_b32 v{d}, 0x3f80')
        e(f'v_lshlrev_b32 v{d}, v{b}, v{d}')
        e(f'v_cndmask_b32 v{d}, 0, v{d}, s[{sVAL}:{sVAL + 1}]')
        for q in range(8):
            e(f'v_cmp_eq_u32 vcc, {q}, v{a}')
            g.nop(2)
            e(f'v_cndmask_b32 v{vSEL + q}, 0, v{d}, vcc')
        g.wait(lg='aphi')
        for i in range(8):
            e(f'v_xor_b32 v{vAPHI + i}, v{vZS}, v{vAPHI + i}')
        e(f's_mov_b32 s{sVAL}, 0xffff')
        e(f's_mov_b32 s{sVAL + 1}, 0xffff')
        e(f'v_bfe_u32 v{a}, v{vL}, 1, 2')
        e(f'v_lshrrev_b32 v{d}, 5, v{vL}')
        e(f'v_xor_b32 v{b}, v{vL}, v{d}')
        e(f'v_and_b32 v{b}, 1, v{b}')
        e(f'v_lshl_add_u32 v{a}, v{b}, 2, v{a}')
        e(f'v_lshlrev_b32 v{a}, 4, v{a}')
        e(f'v_and_b32 v{b}, 31, v{vL}')
        e(f'v_lshl_add_u32 v{a}, v{b}, 7, v{a}')
        e(f's_lshl_b32 s{sT0}, s{sW}, 12')
        e(f's_add_u32 s{sT0}, s{sT0}, {7 * SLOT}')
        e(f'v_add_u32 v{vSA}, s{sT0}, v{a}')
        for j in range(1, 4):
            e(f'v_xor_b32 v{vSA + j}, {16 * j}, v{vSA}')
        e(f'v_lshlrev_b32 v{d}, 7, v{d}')
        e(f'v_bfe_u32 v{a}, v{vL}, 2, 1')
        e(f'v_lshl_add_u32 v{d}, v{a}, 6, v{d}')
        e(f'v_bfe_u32 v{a}, v{vL}, 3, 2')
        e(f'v_lshl_add_u32 v{d}, v{a}, 4, v{d}')
        e(f'v_and_b32 v{a}, 3, v{vL}')
        e(f'v_lshl_add_u32 v{d}, v{a}, 2, v{d}')
        e(f's_lshl_b32 s{sT0}, s{sW}, 8')
        e(f's_add_u32 s{sT0}, s{sT0}, {L_ZS}')
        e(f'v_add_u32 v{vZS}, s{sT0}, v{d}')
        e(f'v_lshlrev_b32 v{a}, 1, v{a}')
        e(f'v_bfe_u32 v{b}, v{vL}, 3, 2')
        e(f'v_xor_b32 v{a}, v{a}, v{b}')
        e(f'v_and_b32 v{b}, 4, v{vL}')
        e(f'v_xor_b32 v{a}, v{a}, v{b}')
        e(f'v_lshlrev_b32 v{a}, 4, v{a}')
        e(f'v_lshrrev_b32 v{b}, 2, v{vL}')
        e(f'v_lshl_add_u32 v{a}, v{b}, 7, v{a}')
        e(f's_lshr_b32 s{sT0}, s{sW}, 1')
        e(f's_lshl_b32 s{sT0}, s{sT0}, 14')
        e(f's_and_b32 s{sT1}, s{sW2K}, 0x800')
        e(f's_add_u32 s{sT0}, s{sT0}, s{sT1}')
        e(f's_add_u32 s{sT0}, s{sT0}, {7 * SLOT}')
        e(f'v_add_u32 v{vM}, s{sT0}, v{a}')
        colperm_addr(vCP)
        e(f's_lshl_b32 s{sT0}, s{sGRP}, 4')
        e(f's_add_u32 s{sT0}, s{sT0}, s{sTG}')
        e(f's_mul_i32 s{sK1}, s{sT0}, {KVP_SZ}')
        e(f's_add_u32 s{sK1}, s{sK1}, s{sW1K}')
        e(f's_add_u32 s{sK1}, s{sK1}, {WS_KVP}')
        e(f's_lshl_b32 s{sT0}, s{sTG}, 2')
        e(f's_and_b32 s{sT1}, s{sW}, 3')
        e(f's_add_u32 s{sT0}, s{sT0}, s{sT1}')
        e(f's_mul_i32 s{sACT}, s{sT0}, {ACT_TB}')
        e(f's_lshl_b32 s{sT0}, s{sGRP}, 12')
        e(f's_add_u32 s{sACT}, s{sACT}, s{sT0}')
        e(f's_lshr_b32 s{sT0}, s{sW}, 2')
        e(f's_lshl_b32 s{sT0}, s{sT0}, 11')
        e(f's_add_u32 s{sACT}, s{sACT}, s{sT0}')
        e(f's_add_u32 s{sACT}, s{sACT}, {WS_ACT + 88 * 1024}')
        e(f's_lshl_b32 s{sFL}, s{sGRP}, 11')
        e(f's_add_u32 s{sFL}, s{sFL}, {WS_FKV}')

    def spread(q, n0, n1):
        t = len(q)
        return {n: q[(n - n0) * t // (n1 - n0):(n - n0 + 1) * t // (n1 - n0)] for n in range(n0, n1)}

    def qslot(s):
        return 13 + s if s < 6 else 5 + s

    def dma_q(s):
        dma_w1(f'q{s}', s, 3072, 0, qslot(s), vWA)

    dmaq = {s: g.capture(lambda: (dma_x(s + 2), q_stage_w(s + 2))) for s in range(6)}
    dmaq[6] = g.capture(lambda: [dma_q(s) for s in range(4)])
    dmaq[7] = g.capture(lambda: [dma_q(s) for s in (4, 5)]) + w2q([6, 4])

    def q_mm(n, j):
        buf = vF + 8 * (n & 1)
        if j == 0:
            mfma(vAK, buf, vX + 4 * n, '0' if n == 0 else vAK)
        else:
            mfma(vAV, vX + 4 * n, buf + 4, '0' if n == 0 else vAV)

    mainloop(2, lambda n: vX + 4 * n, lambda n, j: vF + 8 * (n & 1) + 4 * j, lambda s: QW[s % 3], q_mm, dmaq,
             spread(g.capture(q_consts), 1, 28))
    g.stamp(3)
    vKB, vB0, vB1 = 64, 64, 72
    vE, vP0, vP1 = 96, 112, 120
    def kdma():
        for st in (5, 0, 1, 2, 3):
            dma_w2(st)
        dma_q(6)
        dma_q(7)
    g.half('y', kdma)
    g.nop(8)
    pack16(vKB, vAK)
    mfma(vAK, vAPHI, vKB, '0')
    g.nop(1)
    mfma(vE, vAPHI + 4, vKB + 4, '0')
    pack16(vB1, vAV)
    for i in range(8):
        e(f'v_cndmask_b32 v{vB0 + i}, 0, v{vB1 + i}, s[{sVAL}:{sVAL + 1}]')
    softmax(vAK, vP0, ta)
    e(f'v_xor_b32 v{vB1}, v{vB0}, v{vB1}')
    mfma(vAK, vP0, vSEL, '0')
    mfma(vAK, vP0 + 4, vSEL + 4, vAK)
    for i in range(1, 8):
        e(f'v_xor_b32 v{vB1 + i}, v{vB0 + i}, v{vB1 + i}')
    softmax(vE, vP1, ta)
    e(f'v_add_f32 v{ta}, v{vAK}, v{vAK + 1}')
    mfma(vE, vP1, vSEL, '0')
    mfma(vE, vP1 + 4, vSEL + 4, vE)
    pack16(vP0, vAK)
    e(f'v_add_f32 v{ta}, v{ta}, v{vAK + 2}')
    e(f'v_add_f32 v{ta}, v{ta}, v{vAK + 3}')
    mfma(vAV, vP0, vB0, '0')
    mfma(vAV, vP0 + 4, vB0 + 4, vAV)
    pack16(vP1, vE)
    e(f'v_add_f32 v{tb_}, v{vE}, v{vE + 1}')
    e(f'v_add_f32 v{tb_}, v{tb_}, v{vE + 2}')
    mfma(vAV, vP1, vB1, vAV)
    mfma(vAV, vP1 + 4, vB1 + 4, vAV)
    e(f'v_add_f32 v{tb_}, v{tb_}, v{vE + 3}')
    for i in range(4, 16):
        e(f'v_add_f32 v{ta}, v{ta}, v{vAK + i}')
        e(f'v_add_f32 v{tb_}, v{tb_}, v{vE + i}')
        if i >= 12:
            g.ds(f'ds_write_b128 v{vSA + i - 12}, {vr(vAV + 4 * (i - 12), 4)}', 'sc')
    g.nop(1)
    e(f'v_permlane32_swap_b32 v{ta}, v{tb_}')
    g.nop(1)
    e(f'v_add_f32 v{ta}, v{ta}, v{tb_}')
    g.ds(f'ds_write_b32 v{vZS}, v{ta}', 'sc')
    g.half('o', kdma)
    g.half('y', lambda: g.wait(vm='q7'))
    g.wait(vm='q5', lg='all')
    e('s_barrier')
    g.stamp(4)
    lr, lz, lj = g.newlab('red'), g.newlab('redz'), g.newlab('redj')
    a, b, d = ta, tb_, td
    e(f's_cmp_gt_u32 s{sW}, 3')
    e(f's_cbranch_scc1 {lz}')
    e(f'v_xor_b32 v{b}, 16, v{vM}')
    for tb in range(4):
        e(f'ds_read_b128 {vr(vE + 8 * tb, 4)}, v{vM} offset:{tb * 4096}')
        e(f'ds_read_b128 {vr(vE + 8 * tb + 4, 4)}, v{b} offset:{tb * 4096}')
    g.lab(lj)
    e('s_waitcnt lgkmcnt(4)')
    for i in range(8):
        e(f'v_add_f32 v{vE + i}, v{vE + i}, v{vE + 8 + i}')
    e('s_waitcnt lgkmcnt(0)')
    for i in range(8):
        e(f'v_add_f32 v{vE + 16 + i}, v{vE + 16 + i}, v{vE + 24 + i}')
    for i in range(8):
        e(f'v_add_f32 v{vE + i}, v{vE + i}, v{vE + 16 + i}')
    for i in range(4):
        e(f'v_cvt_pk_bf16_f32 v{vE + 8 + i}, v{vE + 2 * i}, v{vE + 2 * i + 1}')
    g.vmop(f'buffer_store_dwordx4 {vr(vE + 8, 4)}, v{vL16}, {srd(SWS)}, s{sK1} offen sc1', 'kvst', cond='o')
    g.vm.append(('kvst', True))
    e('s_mov_b64 exec, -1')
    e(f's_branch {lr}')
    g.lab(lz)
    e(f's_cmp_gt_u32 s{sW}, 4')
    e(f's_cbranch_scc1 {lr}')
    e(f'v_bfe_u32 v{a}, v{vL}, 3, 1')
    e(f'v_lshlrev_b32 v{a}, 10, v{a}')
    e(f'v_bfe_u32 v{b}, v{vL}, 2, 1')
    e(f'v_lshl_add_u32 v{a}, v{b}, 7, v{a}')
    e(f'v_and_b32 v{b}, 3, v{vL}')
    e(f'v_lshl_add_u32 v{a}, v{b}, 5, v{a}')
    e(f'v_add_u32 v{a}, {L_ZS}, v{a}')
    e('s_mov_b64 exec, 0xffff')
    for tb in range(4):
        e(f'ds_read_b128 {vr(vE + 8 * tb, 4)}, v{a} offset:{tb * 256}')
        e(f'ds_read_b128 {vr(vE + 8 * tb + 4, 4)}, v{a} offset:{tb * 256 + 16}')
    e(f's_branch {lj}')
    g.lab(lr)

    def qq_reads(n):
        for v in range(2):
            trd(vF + 4 * (n % 4), vT, qslot(n >> 2), n & 3, v, f'q{n}')

    p2_bases()
    for n in range(3):
        qq_reads(n)
    dq, mv = [], []
    for n in range(32):
        if n + 3 < 32:
            qq_reads(n + 3)
        g.wait(lg=f'q{n}')
        mfma(vAK, vF + 4 * (n % 4), vX + 4 * n, '0' if n == 0 else vAK)
        if n == 7:
            g.wait(vm='q7')
            e('s_barrier')
            dq = w2q([7, 8, 9, 10, 13, 14])
            mv = g.capture(lambda: [p2_wread(vWR + 8 * st, st) for st in range(7)])
        if n == 23:
            assert not mv
            e(f's_lshl_b32 s{sT1}, s{sTG}, 7')
            e(f's_add_u32 s{sT1}, s{sT1}, s{sFL}')
            g.wait(vm=['kvst', 'w2_10'], lg='w6')
            e('s_barrier')
            publish()
            dq += w2q([15, 16, 17])
            mv = g.capture(lambda: [p2_wread(vWR + 8 * st, st) for st in range(7, 11)])
        if n in (7, 9, 11, 13, 16, 19, 24, 27, 30):
            g.play(dq, 1)
        g.play(mv, 2)
    assert not dq and not mv
    g.wait(lg='all')
    e('s_barrier')
    g.stamp(5)
    rest = [18, 11, 12] + list(range(19, 30))
    qa = opt.get('qa', 6)
    g.half('y', lambda: [dma_w2(st) for st in rest[:qa]])
    g.nop(8)
    pack16(vKB, vAK)
    mfma(vAK, vAPHI, vKB, '0')
    g.nop(1)
    mfma(vE, vAPHI + 4, vKB + 4, '0')
    g.half('o', lambda: probe(0xffff))
    e(f'v_lshrrev_b32 v{td}, 2, v{vL}')
    e(f'v_mul_u32_u24 v{td}, {KVP_SZ - 64}, v{td}')
    e(f'v_add_u32 v{td}, v{td}, v{vL16}')
    e(f's_mul_i32 s{sT0}, s{sGRP}, {16 * KVP_SZ}')
    e(f's_add_u32 s{sT0}, s{sT0}, {WS_KVP}')
    e(f's_lshl_b32 s{sT1}, s{sW}, 6')
    e(f's_add_u32 s{sT1}, s{sT1}, s{sT0}')
    e(f's_add_u32 s{sT1}, s{sT1}, 4096')
    e(f's_add_u32 s{sT0}, s{sT0}, s{sW1K}')
    softmax(vAK, vP0, ta)
    softmax(vE, vP1, ta)
    g.stamp(6)
    vGA = [32 + 4 * p for p in range(12)] + [216 + 4 * p for p in range(5)]
    vS = 96
    a, b, d = ta, tb_, td

    def gather():
        check(0xffff)
        g.stamp(7)
        g.vmop(f'buffer_load_dwordx4 {vr(vGA[16], 4)}, v{td}, {srd(SWS)}, s{sT1} offen sc1', 'ga')
        for p in range(16):
            g.vmop(f'buffer_load_dwordx4 {vr(vGA[p], 4)}, v{vL16}, {srd(SWS)}, s{sT0} offen sc1', f'ga{p}')
            if p < 15:
                e(f's_add_u32 s{sT0}, s{sT0}, {KVP_SZ}')
        e(f'v_and_b32 v{b}, 0x30, v{vL}')
        e(f'v_xor_b32 v{b}, v{b}, v{vL16}')
        e(f's_add_u32 s{sT0}, s{sW2K}, {L_TAB}')
        e(f'v_add_u32 v{b}, s{sT0}, v{b}')
        for p in range(16):
            g.wait(vm=f'ga{p}')
            mfma(vS, vSEL, vGA[p], '0' if p == 0 else vS)
            if p == 0:
                e(f'ds_write_b128 v{b}, {vr(vGA[16], 4)} offset:1024')
        g.nop(12)
        for i in range(4):
            e(f'v_cvt_pk_bf16_f32 v{vS + 8 + i}, v{vS + 2 * i}, v{vS + 2 * i + 1}')
        e(f'ds_write_b128 v{b}, {vr(vS + 8, 4)}')
    g.half('o', gather)
    g.half('y', lambda: [dma_w2(st) for st in rest[qa:]])
    e(f'v_lshrrev_b32 v{d}, 5, v{vL}')
    e(f'v_lshlrev_b32 v{d}, 1, v{d}')
    e(f'v_bfe_u32 v{a}, v{vL}, 2, 2')
    e(f'v_xor_b32 v{d}, v{d}, v{a}')
    e(f'v_lshlrev_b32 v{d}, 4, v{d}')
    e(f'v_and_b32 v{a}, 31, v{vL}')
    e(f'v_lshl_add_u32 v{a}, v{a}, 6, v{d}')
    e(f's_and_b32 s{sT0}, s{sW1K}, 0x1000')
    e(f's_add_u32 s{sT0}, s{sT0}, {L_TAB}')
    e(f'v_add_u32 v{a}, s{sT0}, v{a}')
    e(f'v_xor_b32 v{d}, 16, v{a}')
    fl_p1()
    g.wait(lg='all')
    e('s_barrier')
    g.stamp(8)
    vKA, vD0, vD1 = 32, 64, 80
    for h in range(2):
        for t in range(2):
            g.ds(f'ds_read_b128 {vr(vKA + 8 * h + 4 * t, 4)}, v{d if t else a} offset:{2048 * h}', f'k{h}{t}')
    probe(0xcccc)
    for h in range(2):
        for t in range(2):
            g.wait(lg=f'k{h}{t}')
            mfma(vD0 + 16 * h, vKA + 8 * h + 4 * t, vP0 + 8 * h + 4 * t, '0' if t == 0 else vD0 + 16 * h)
    g.nop(8)
    for h in range(2):
        D = vD0 + 16 * h
        e(f'v_add_f32 v{ta + h}, v{D + 8}, v{D + 9}')
        for i in range(10, 16):
            e(f'v_add_f32 v{ta + h}, v{ta + h}, v{D + i}')
    g.nop(2)
    e(f'v_permlane32_swap_b32 v{ta}, v{tb_}')
    g.nop(1)
    e(f'v_add_f32 v{ta}, v{ta}, v{tb_}')
    e(f'v_add_f32 v{ta}, {hex(f2u(1e-6))}, v{ta}')
    e(f'v_rcp_f32 v{ta}, v{ta}')
    g.nop(1)
    e(f'v_mov_b32 v{tb_}, v{ta}')
    g.nop(2)
    e(f'v_permlane32_swap_b32 v{ta}, v{tb_}')
    g.nop(1)
    for h in range(2):
        D = vD0 + 16 * h
        for i in range(0, 8, 2):
            e(f'v_pk_mul_f32 {vr(D + i, 2)}, {vr(D + i, 2)}, {vr(ta, 2)} op_sel:[0,{h}] op_sel_hi:[1,{h}]')
        for i in range(4):
            e(f'v_cvt_pk_bf16_f32 v{vS + 4 * h + i}, v{D + 2 * i}, v{D + 2 * i + 1}')
    g.vmop(f'buffer_store_dwordx4 {vr(vS, 4)}, v{vL16}, {srd(SWS)}, s{sACT} offen sc1', 'ost')
    g.vmop(f'buffer_store_dwordx4 {vr(vS + 4, 4)}, v{vL16}, {srd(SWS)}, s{sACT} offen offset:1024 sc1', 'ost')
    qb = opt.get('qb', 10)
    check(0xcccc)
    g.half('o', lambda: [dma_w2(st) for st in rest[:qb]])
    p2_bias()
    p1flag_off()
    g.half('o', lambda: g.wait(vm='ost'))
    g.half('y', lambda: g.wait(vm='ost'))
    e('s_barrier')
    publish()
    g.stamp(9)
    g.half('o', lambda: [dma_w2(st) for st in rest[qb:]])
    for st in range(NH):
        hload(st)
    e('s_branch L_p2')

    g.lab('L_ffn')
    g.vm = list(vm_ffn)
    g.lg = []
    c('================ FFN workgroup')
    vA = 32
    vF = 80
    vB = 112
    vG = 128
    sLAST = 3
    mksrd(SSM, 16, 2752)
    colperm_addr(vCP)
    e(f's_lshr_b32 s{sT2}, s{sW}, 2')
    e(f's_mul_i32 s{sLAST}, s{sLAST}, s{sT2}')
    e(f's_lshl_b32 s{sT3}, s{sT2}, 6')
    e(f's_add_u32 s{sT3}, s{sT3}, s{sWO_}')
    for i in range(3):
        g.vmop(f'buffer_load_ushort v{vB + 4 * i}, v{vCP}, {srd(SSM)}, s{sT3} offen offset:{128 * i}', 'st0')
    e(f's_lshl_b32 s{sACT}, s{sT3}, 5')
    e(f's_lshl_b32 s{sT2}, s{sTG}, 2')
    e(f's_and_b32 s{sT3}, s{sW}, 3')
    e(f's_add_u32 s{sT2}, s{sT2}, s{sT3}')
    e(f's_mul_i32 s{sT2}, s{sT2}, {ACT_TB}')
    e(f's_add_u32 s{sACT}, s{sACT}, s{sT2}')
    e(f's_add_u32 s{sACT}, s{sACT}, {WS_ACT}')
    setup_common()
    for i in range(3):
        for k in range(1, 4):
            e(f'v_mov_b32 v{vB + 4 * i + k}, 0')
    for k in range(4):
        e(f'v_mov_b32 v{vB + 12 + k}, 0x3f803f80')
    dma_x(1)
    f_stage_w(1)
    g.stamp(1)
    g.wait(vm='st0', lg='all')
    for j in range(3):
        mfma(vA + 16 * j, vB + 4 * j, vB + 12, '0')
    e('s_barrier')
    g.stamp(2)

    def g_loads():
        def f():
            e(f's_lshl_b32 s{sD}, s{sGRP}, 14')
            e(f's_add_u32 s{sD}, s{sD}, s{sXO}')
            e(f's_add_u32 s{sD}, s{sD}, s{sW2K}')
            g.vmop(f'buffer_load_dwordx4 {vr(vG, 4)}, v{vL16}, {srd(SX)}, s{sD} offen', 'g')
        g.atomic(f)
        g.vmop(f'buffer_load_dwordx4 {vr(vG + 4, 4)}, v{vL16}, {srd(SX)}, s{sD} offen offset:1024', 'g')
        g.vmop(f'global_load_dwordx4 {vr(vG + 8, 4)}, v{vL16}, s[22:23]', 'g')

    def g_compute():
        a, b, acc = ta, tb_, td
        make_tag()
        g.wait(vm='g')
        for i in range(4):
            for hi in range(2):
                op = (lambda d_, s_: f'v_and_b32 v{d_}, 0xffff0000, v{s_}') if hi else (lambda d_, s_: f'v_lshlrev_b32 v{d_}, 16, v{s_}')
                e(op(b, vG + 8 + i))
                for t in range(2):
                    e(op(a, vG + 4 * t + i))
                    e(f'v_mul_f32 v{acc + t}, v{a}, v{b}' if i == 0 and hi == 0 else f'v_fmac_f32 v{acc + t}, v{a}, v{b}')
        g.nop(2)
        e(f'v_permlane32_swap_b32 v{acc}, v{acc + 1}')
        g.nop(1)
        e(f'v_add_f32 v{acc}, v{acc}, v{acc + 1}')
        for r in (1, 2, 4, 8):
            g.nop(2)
            e(f'v_add_f32_dpp v{acc}, v{acc}, v{acc} row_ror:{r} row_mask:0xf bank_mask:0xf')
        e(f'v_mov_b32 v{a}, v{acc}')
        g.nop(2)
        e(f'v_permlane16_swap_b32 v{a}, v{acc}')
        g.nop(1)
        e(f'v_add_f32 v{acc}, v{acc}, v{a}')
        e(f'v_mul_f32 v{acc}, {hex(LOG2E | 0x80000000)}, v{acc}')
        e(f'v_exp_f32 v{acc}, v{acc}')
        g.nop(1)
        e(f'v_add_f32 v{acc}, 1.0, v{acc}')
        e(f'v_rcp_f32 v{acc}, v{acc}')
        e(f'v_lshrrev_b32 v{a}, 3, v{vL}')
        e(f's_lshl_b32 s{sT0}, s{sTG}, 9')
        e(f's_lshl_b32 s{sT1}, s{sGRP}, 6')
        e(f's_add_u32 s{sT0}, s{sT0}, s{sT1}')
        e(f's_lshl_b32 s{sT1}, s{sW}, 3')
        e(f's_add_u32 s{sT0}, s{sT0}, s{sT1}')
        e(f's_add_u32 s{sT0}, s{sT0}, {WS_G}')

        def st():
            e('s_mov_b32 exec_lo, 1')
            e('s_mov_b32 exec_hi, 1')
            g.vmop(f'buffer_store_dword v{acc}, v{a}, {srd(SWS)}, s{sT0} offen sc1', 'ost')
            e('s_mov_b64 exec, -1')
        g.atomic(st)
        K0 = -2.0 * 0.7978845608028654 * 1.4426950408889634
        e(f's_mov_b32 s{sK1}, {hex(f2u(K0 * 0.044715))}')
        e(f'v_mov_b32 v{vM}, {hex(f2u(K0))}')
        fl_p1()

    dmaq = {s: g.capture(lambda: (dma_x(s + 2), f_stage_w(s + 2))) for s in range(6)}
    dmaq[2] = g.capture(g_loads) + dmaq[2]
    dmaq[6] = w2q([0, 1, 2, 3, 4])
    dmaq[7] = w2q([5, 6, 7, 8, 9])

    def f_mm(n, j):
        buf = vF + 16 * (n & 1)
        mfma(vA + 16 * j, buf + 4 + 4 * j, buf, vA + 16 * j)

    mainloop(3, lambda n: vF + 16 * (n & 1), lambda n, j: vF + 16 * (n & 1) + 4 + 4 * j, lambda s: FW[s % 3], f_mm, dmaq,
             spread(g.capture(g_compute), 16, 28))
    g.stamp(3)
    p2_bases()
    vE = 80

    def gelu(j):
        A = vA + 16 * j
        P = lambda r: vr(r, 2)
        for i in range(0, 16, 2):
            e(f'v_pk_mul_f32 {P(vE + i)}, {P(A + i)}, {P(A + i)}')
        for i in range(0, 16, 2):
            e(f'v_pk_fma_f32 {P(vE + i)}, {P(vE + i)}, s[{sK1 - 1}:{sK1}], {P(vM - 1)} op_sel:[0,1,1] op_sel_hi:[1,1,1]')
        for i in range(0, 16, 2):
            e(f'v_pk_mul_f32 {P(vE + i)}, {P(vE + i)}, {P(A + i)}')
        for i in range(16):
            e(f'v_exp_f32 v{vE + i}, v{vE + i}')
        for i in range(0, 16, 2):
            e(f'v_pk_add_f32 {P(vE + i)}, {P(vE + i)}, 1.0 op_sel_hi:[1,0]')
        for i in range(16):
            e(f'v_rcp_f32 v{vE + i}, v{vE + i}')
        for i in range(0, 16, 2):
            e(f'v_pk_mul_f32 {P(vE + i)}, {P(vE + i)}, {P(A + i)}')
        pack16(A, vE)

    def hstore(j):
        A = vA + 16 * j
        e(f's_add_u32 s{sT0}, s{sACT}, {4096 * j}')
        if j == 2:
            e(f's_add_u32 s{sT0}, s{sT0}, s{sLAST}')
        g.vmop(f'buffer_store_dwordx4 {vr(A, 4)}, v{vL16}, {srd(SWS)}, s{sT0} offen sc1', 'ost')
        g.vmop(f'buffer_store_dwordx4 {vr(A + 4, 4)}, v{vL16}, {srd(SWS)}, s{sT0} offen offset:1024 sc1', 'ost')

    def fdma():
        for st in (10, 13, 14, 15, 11, 12, 16, 17, 18):
            dma_w2(st)
    g.half('y', fdma)
    for j in range(3):
        gelu(j)
        hstore(j)
    g.stamp(4)
    g.half('o', fdma)
    p1flag_off()
    g.half('o', lambda: g.wait(vm=['ost', 'w2_10']))
    g.half('y', lambda: g.wait(vm=['ost', 'w2_10']))
    e('s_barrier')
    publish()
    g.stamp(5)
    w2_move()
    g.wait(lg='all')
    e('s_barrier')
    g.play(w2q(range(19, 30)))
    g.stamp(6)
    p2_bias()
    probe(0xcccc)
    check(0xcccc)
    g.stamp(9)
    for st in range(NH):
        hload(st)

    g.lab('L_p2')
    g.vm = [(f'h{st}', False) for st in range(NH)]
    g.lg = []
    c('================ phase 2')
    g.stamp(10)
    vGV = vM
    nxt = NH
    OP = opt.get('opoll', 18)
    for st in range(30):
        if st == OP - 2:
            lE = g.newlab('ep')
            e(f's_lshl_b32 s{sK1}, s2, 3')
            e(f's_add_u32 s{sK1}, s{sK1}, s{sW}')
            e(f's_cmp_lg_u32 s{sK1}, 2047')
            e(f's_cbranch_scc1 {lE}')
            vm_save = list(g.vm)
            e(f'v_lshrrev_b32 v{ta}, 1, v{vL}')
            e(f'v_and_b32 v{tb_}, 1, v{vL}')
            e(f'v_lshl_add_u32 v{ta}, v{ta}, 2, v{tb_}')
            e(f'v_lshlrev_b32 v{vFO}, 7, v{ta}')
            for k in range(2):
                e(f's_mov_b32 s{sFL}, {WS_FP1 + 256 + k * 16384}')
                probe(-1)
                check(-1)
            e(f'v_lshlrev_b32 v{vFO}, 7, v{vL}')
            fl_p1()
            g.vm = vm_save
            g.lab(lE)
            probe(0x3333)
        if st == OP:
            g.stamp(11)
            check(0x3333)
            g.stamp(12)
            lE = g.newlab('ep')
            e(f's_cmp_lg_u32 s{sK1}, 2047')
            e(f's_cbranch_scc1 {lE}')
            e(f'v_mov_b32 v{vPR}, s{sTAG}')
            e('s_mov_b64 exec, 1')
            g.vmop(f'buffer_store_dword v{vPR}, v{vL16}, {srd(SWS)}, 0 offen sc1', 'ep', cond=True)
            e('s_mov_b64 exec, -1')
            g.lab(lE)
            for k in range(22, 30):
                hload(k)
            e(f's_lshl_b32 s{sT0}, s{sTT}, 1')
            e(f's_lshr_b32 s{sT1}, s{sW}, 2')
            e(f's_add_u32 s{sT0}, s{sT0}, s{sT1}')
            e(f's_lshl_b32 s{sT0}, s{sT0}, 7')
            e(f's_add_u32 s{sT0}, s{sT0}, {WS_G}')
            e(f'v_and_b32 v{ta}, 31, v{vL}')
            e(f'v_lshlrev_b32 v{ta}, 2, v{ta}')
            g.vmop(f'buffer_load_dword v{vGV}, v{ta}, {srd(SWS)}, s{sT0} offen sc1', 'gv')
        if 11 <= st + 1 < 30:
            p2_wread(vWL + 8 * ((st + 1) & 1), st + 1)
        g.wait(vm=f'h{st}', lg=f'w{st}')
        if st == 0:
            for nb in range(2):
                mfma(vAB + 16 * nb, vB2 + 4 * nb, vB2 + 8, '0')
        w = vWR + 8 * st if st < 11 else vWL + 8 * (st & 1)
        acc = vAB if st < 22 else vAA
        for nb in range(2):
            mfma(acc + 16 * nb, w + 4 * nb, hreg(st), '0' if st == 22 else acc + 16 * nb)
        if st == 8:
            e('s_barrier')
        if st == 20:
            e('s_barrier')
        if nxt < 22:
            hload(nxt)
            nxt += 1
    g.stamp(13)
    a, b, d = ta, tb_, td
    e(f'v_and_b32 v{a}, 31, v{vL}')
    e(f'v_and_b32 v{b}, 15, v{vL}')
    e(f'v_lshrrev_b32 v{d}, 5, v{vL}')
    e(f'v_xor_b32 v{b}, v{b}, v{d}')
    e(f'v_lshlrev_b32 v{b}, 4, v{b}')
    e(f'v_lshl_add_u32 v{a}, v{a}, 8, v{b}')
    e(f's_and_b32 s{sT0}, s{sW}, 3')
    e(f's_lshl_b32 s{sT0}, s{sT0}, 14')
    e(f's_lshr_b32 s{sT1}, s{sW}, 2')
    e(f's_lshl_b32 s{sT1}, s{sT1}, 13')
    e(f's_add_u32 s{sT0}, s{sT0}, s{sT1}')
    e(f's_add_u32 s{sT0}, s{sT0}, {11 * SLOT}')
    e(f'v_add_u32 v{a}, s{sT0}, v{a}')
    g.wait(vm='gv')
    for q in range(8):
        e(f'v_xor_b32 v{b}, {32 * q}, v{a}')
        for i in range(4 * q, 4 * q + 4):
            e(f'v_sub_f32 v{vAA + i}, v{vAA + i}, v{vAB + i}')
        for i in range(4 * q, 4 * q + 4):
            e(f'v_fmac_f32 v{vAB + i}, v{vGV}, v{vAA + i}')
        e(f'ds_write_b128 v{b}, {vr(vAB + 4 * q, 4)}')
    e(f'v_lshrrev_b32 v{a}, 3, v0')
    e(f'v_and_b32 v{vM}, 7, v0')
    e(f'v_lshlrev_b32 v{d}, 4, v{vM}')
    e(f'v_lshl_add_u32 v{vHA}, v{a}, 10, v{d}')
    e(f'v_lshlrev_b32 v{vM}, 1, v{vM}')
    e(f'v_and_b32 v{d}, 15, v{a}')
    e(f'v_xor_b32 v{vM}, v{vM}, v{d}')
    e(f'v_lshlrev_b32 v{vM}, 4, v{vM}')
    e(f'v_lshl_add_u32 v{a}, v{a}, 8, v{vM}')
    e(f'v_add_u32 v{a}, {11 * SLOT}, v{a}')
    e(f'v_xor_b32 v{d}, 16, v{a}')
    e(f's_lshl_b32 s{sT0}, s{sTT}, 16')
    e(f's_add_u32 s{sT0}, s{sT0}, s{sW2O}')
    e('s_waitcnt lgkmcnt(0)')
    e('s_barrier')
    R = 32
    for k in range(4):
        e(f'ds_read_b128 {vr(R + 8 * k, 4)}, v{a} offset:{k * 16384}')
        e(f'ds_read_b128 {vr(R + 8 * k + 4, 4)}, v{d} offset:{k * 16384}')
    e('s_waitcnt lgkmcnt(4)')
    for i in range(8):
        e(f'v_add_f32 v{R + i}, v{R + i}, v{R + 8 + i}')
    e('s_waitcnt lgkmcnt(0)')
    for i in range(8):
        e(f'v_add_f32 v{R + 16 + i}, v{R + 16 + i}, v{R + 24 + i}')
    for i in range(8):
        e(f'v_add_f32 v{R + i}, v{R + i}, v{R + 16 + i}')
    for i in range(4):
        e(f'v_cvt_pk_bf16_f32 v{R + 8 + i}, v{R + 2 * i}, v{R + 2 * i + 1}')
    e(f'buffer_store_dwordx4 {vr(R + 8, 4)}, v{vHA}, {srd(SOUT)}, s{sT0} offen')
    if opt.get('stamps'):
        e('s_waitcnt vmcnt(0)')
        g.stamp(14)
        e('s_memrealtime s[98:99]')
        e('s_waitcnt lgkmcnt(0)')
        e('s_mov_b32 s97, s98')
        e(f's_lshl_b32 s{sT0}, s2, 3')
        e(f's_add_u32 s{sT0}, s{sT0}, s{sW}')
        e(f's_lshl_b32 s{sT0}, s{sT0}, 7')
        e(f's_add_u32 s{sT0}, s{sT0}, {WS_STAMP}')
        e('s_mov_b64 exec, 1')
        for i in range(18):
            e(f'v_mov_b32 v{ta}, s{80 + i}')
            e(f'buffer_store_dword v{ta}, v{vL16}, {srd(SWS)}, s{sT0} offen offset:{4 * i}')
    g.lab('L_end')
    e('s_endpgm')
    return g.L


HEAD = open('cdna_kernels/' + NAME + '.s.ref').read().split('; Override')[0]


def spinner(opt):
    if opt.get('list') != 4:
        return ''
    A, B, C, sh = opt.get('sa', 17), opt.get('sb', 16), opt.get('sc', -1), opt.get('sh', 0)
    L = ['s_cmp_lg_u32 s2, 0', 's_cbranch_scc1 L_spe', 's_load_dwordx2 s[4:5], s[0:1], 96', 'v_lshlrev_b32 v1, 10, v0',
         f'v_add_u32 v1, {WS_STAMP}, v1', 'v_mov_b32 v4, 0', 'v_mov_b32 v5, -1', 's_waitcnt lgkmcnt(0)']
    for k in range(4):
        L += [f'global_load_dword v2, v1, s[4:5] offset:{4 * A}', f'global_load_dword v3, v1, s[4:5] offset:{4 * max(B, 0)}',
              f'global_load_dword v6, v1, s[4:5] offset:{4 * max(C, 0)}', 'v_add_u32 v1, 0x10000, v1', 's_waitcnt vmcnt(0)']
        if C >= 0:
            L += ['v_sub_u32 v2, v2, v6']
        if not (opt.get('half') == 1 and k >= 2) and not (opt.get('half') == 2 and k < 2):
            L += ['v_max_u32 v4, v4, v2', 'v_min_u32 v5, v5, v3']
    L += ['s_mov_b32 s6, 0', 's_mov_b32 s7, -1', 's_nop 4']
    for i in range(64):
        L += [f'v_readlane_b32 s8, v4, {i}', f'v_readlane_b32 s9, v5, {i}', 's_nop 1', 's_max_u32 s6, s6, s8', 's_min_u32 s7, s7, s9']
    if B >= 0:
        L += ['s_sub_u32 s6, s6, s7']
    L += [f's_lshr_b32 s6, s6, {sh}', f's_mul_i32 s6, s6, {opt.get("mul", 1)}', 's_min_u32 s6, s6, 20000', 's_memrealtime s[8:9]', 's_waitcnt lgkmcnt(0)', 'L_spl:',
          's_memrealtime s[10:11]', 's_waitcnt lgkmcnt(0)', 's_sub_u32 s10, s10, s8', 's_cmp_lt_u32 s10, s6', 's_cbranch_scc1 L_spl', 'L_spe:']
    return ''.join('  ' + x + '\n' for x in L)


def emit(opt):
    body = build(opt)
    s = HEAD
    main = f'; @launch kernel={NAME}_kernel grid=(256,1,1) block=(512,1,1) lds={LDS_BYTES}\n'
    emp = '; @launch kernel=empty_kernel grid=(256,1,1) block=(64,1,1) lds=0\n'
    if opt.get('list') == 1:
        s += main + emp
    elif opt.get('list') == 2:
        s += emp + main
    elif opt.get('list') == 3:
        s += main + main
    elif opt.get('list') == 4:
        s += main + '; @launch kernel=empty_kernel grid=(1,1,1) block=(64,1,1) lds=0\n'
    else:
        s += f'; @launch grid=(256,1,1) block=(512,1,1) lds={LDS_BYTES}\n'
    s += '.amdgcn_target "amdgcn-amd-amdhsa--gfx950"\n.text\n'
    s += f'.globl {NAME}_kernel\n.p2align 8\n.type {NAME}_kernel,@function\n{NAME}_kernel:\n'
    s += '\n'.join(body) + '\n'
    s += '; padding so that the code prefetch stays inside the section\n.fill 8192, 4, 0xbf800000\n'
    s += f'''.section .rodata,"a"
.p2align 6
.amdhsa_kernel {NAME}_kernel
  .amdhsa_next_free_vgpr 256
  .amdhsa_next_free_sgpr 102
  .amdhsa_accum_offset 256
  .amdhsa_group_segment_fixed_size 0
  .amdhsa_kernarg_size 104
  .amdhsa_user_sgpr_count 2
  .amdhsa_user_sgpr_kernarg_segment_ptr 1
  .amdhsa_system_sgpr_workgroup_id_x 1
.end_amdhsa_kernel
'''
    if opt.get('list') in (1, 2, 4):
        s += '''.text
.globl empty_kernel
.p2align 8
.type empty_kernel,@function
empty_kernel:
''' + spinner(opt) + '''  s_endpgm
.section .rodata,"a"
.p2align 6
.amdhsa_kernel empty_kernel
  .amdhsa_next_free_vgpr 8
  .amdhsa_next_free_sgpr 16
  .amdhsa_accum_offset 8
  .amdhsa_group_segment_fixed_size 0
  .amdhsa_kernarg_size 104
  .amdhsa_user_sgpr_count 2
  .amdhsa_user_sgpr_kernarg_segment_ptr 1
  .amdhsa_system_sgpr_workgroup_id_x 1
.end_amdhsa_kernel
'''
    return s


if __name__ == '__main__':
    out = sys.argv[1]
    opt = {}
    for a in sys.argv[2:]:
        k, v = a.split('=')
        opt[k] = int(v)
    open(out, 'w').write(emit(opt))
```

```python
import sys

NAME = 'gated_mix__linear_kernel_hedgehog__dense_activation_gelu__prompt'

WS_E = 0
WS_FP1 = 0x1000
WS_FKV = 0x10000
WS_G = 0x20000
WS_KVP = 0x40000
KVP_SZ = 4352
WS_ACT = 0x100000
ACT_TB = 120 * 1024
WS_STAMP = 0x1000000
WS_SIZE = 0x2000000
OOB = 0x70000000

SLOT = 8192
MISC = 19 * SLOT
L_WPHI = MISC
L_ZS = MISC + 2048
L_TAB = MISC
LDS_BYTES = 163840

LOG2E = 0x3fb8aa3b


def f2u(x):
    import struct
    return struct.unpack('<I', struct.pack('<f', x))[0]


class Gen:
    def __init__(self, opt):
        self.o = opt
        self.L = []
        self.vm = []
        self.lg = []
        self.nlab = 0
        self.cap = None
        self.who = False

    def e(self, s):
        if self.cap is not None:
            self.cap.append([('e', s)])
        else:
            self.L.append('  ' + s)

    def c(self, s):
        self.L.append('  ; ' + s)

    def lab(self, s):
        assert self.cap is None
        self.L.append(s + ':')

    def newlab(self, p):
        self.nlab += 1
        return f'L_{p}{self.nlab}'

    def vmop(self, s, tag, cond=False):
        if self.cap is not None:
            self.cap.append([('vm', s, tag, cond)])
        else:
            self.L.append('  ' + s)
            self.vm.append((tag, cond if cond else self.who))

    def ds(self, s, tag):
        if self.cap is not None:
            self.cap.append([('ds', s, tag)])
        else:
            self.L.append('  ' + s)
            self.lg.append(tag)

    def wait(self, vm=None, lg=None):
        if self.cap is not None:
            self.cap.append([('wait', vm, lg)])
            return
        parts = []
        halves = self.who if self.who else 'oy'
        n = None
        if vm == 'all':
            n = 0
        elif vm is not None:
            tags = [vm] if isinstance(vm, str) else vm
            ns = []
            for half in halves:
                seq = [(t, cnd) for (t, cnd) in self.vm if cnd in (False, True, half)]
                last = max([i for i, (t, cnd) in enumerate(seq) if t in tags], default=-1)
                if last >= 0:
                    ns.append(sum(1 for (t, cnd) in seq[last + 1:] if cnd is not True))
            if ns:
                n = min(ns)
        if n is not None:
            assert n <= 63
            parts.append(f'vmcnt({n})')
            keep = set()
            for half in halves:
                k = 0
                for i in range(len(self.vm) - 1, -1, -1):
                    cnd = self.vm[i][1]
                    if cnd in (False, True, half):
                        if k >= n:
                            break
                        keep.add(i)
                        if cnd is not True:
                            k += 1
            if self.who:
                other = 'y' if self.who == 'o' else 'o'
                self.vm = [x if i in keep or x[1] in (True, other) else (x[0], other)
                           for i, x in enumerate(self.vm) if i in keep or x[1] != self.who]
            else:
                self.vm = [x for i, x in enumerate(self.vm) if i in keep]
        if lg == 'all':
            parts.append('lgkmcnt(0)')
            self.lg = []
        elif lg is not None:
            tags = [lg] if isinstance(lg, str) else lg
            last = max([i for i, t in enumerate(self.lg) if t in tags], default=-1)
            if last >= 0:
                n = min(len(self.lg) - last - 1, 15)
                parts.append(f'lgkmcnt({n})')
                self.lg = self.lg[len(self.lg) - n:] if n else []
        if parts:
            self.L.append('  s_waitcnt ' + ' '.join(parts))

    def capture(self, fn, atomic=False):
        old, self.cap = self.cap, []
        fn()
        q, self.cap = self.cap, old
        if atomic:
            q = [[x for grp in q for x in grp]]
        return q

    def atomic(self, fn):
        if self.cap is None:
            fn()
        else:
            self.cap += self.capture(fn, atomic=True)

    def play(self, q, k=None):
        k = len(q) if k is None else min(k, len(q))
        for _ in range(k):
            for x in q.pop(0):
                if x[0] == 'e':
                    self.e(x[1])
                elif x[0] == 'vm':
                    self.vmop(x[1], x[2], x[3])
                elif x[0] == 'ds':
                    self.ds(x[1], x[2])
                else:
                    self.wait(x[1], x[2])

    def weave(self, main, *fills):
        n = len(main)
        tot = [len(f) for f in fills]
        for i in range(n):
            self.play(main, 1)
            for f, t in zip(fills, tot):
                self.play(f, (i + 1) * t // n - i * t // n)

    def half(self, who, fn):
        l = self.newlab('half')
        self.e('s_cmp_gt_u32 s60, 3')
        self.e(f's_cbranch_scc{1 if who == "o" else 0} {l}')
        self.who = who
        fn()
        self.who = False
        self.lab(l)

    def nop(self, n):
        while n > 0:
            k = min(n, 16)
            self.e(f's_nop {k - 1}')
            n -= k

    def stamp(self, i):
        if not self.o.get('stamps') or (self.o.get('stamps') == 2 and i != 14):
            return
        names = self.o.get('sn')
        if names and i != 14:
            names = names.split(',')
            if str(i) not in names:
                return
            i = names.index(str(i)) + 1
        elif not isinstance(i, int):
            return
        self.e('s_memtime s[98:99]')
        self.wait(lg='all')
        self.e(f's_mov_b32 s{80 + i}, s98')


def vr(a, n=1):
    return f'v{a}' if n == 1 else f'v[{a}:{a + n - 1}]'


SX, SW1, SW2, SWO, SWS, SOUT, SSM = 32, 36, 40, 44, 48, 52, 56
sW, sTG, sGRP, sCGI, sTT, sD, sW1K, sW2K = 60, 61, 62, 63, 64, 65, 66, 67
sTAG = 68
sXO = 70
sWO_ = 71
sT0, sT1, sT2, sT3 = 72, 73, 74, 75
sVAL = 76
sC = 78
sCNT = 79
sW2O = 30
sACT = 31
sFL = 12
sK1 = 13
sRO = 26
sKS = 27
sR2, sR3 = 4, 5
XS = {2: 7, 0: 9, 1: 11}
XBASE = 7 * SLOT


def srd(r):
    return f's[{r}:{r + 3}]'


def build(opt):
    g = Gen(opt)
    e, c = g.e, g.c

    vL = 1
    vXA0, vXA1, vWA, vWA2, vW2A = 2, 3, 4, 5, 6
    vL16 = 7
    vXR = 8
    vT = 12
    vHA = 18
    vM = 19
    vTmp = 28
    vPR = 26
    vFO = 8
    vU = 9
    vWR = 128
    ta, tb_, td = vTmp, vTmp + 1, vTmp + 2

    def mksrd(r, lo, size):
        e(f's_mov_b32 s{r}, s{lo}')
        e(f's_mov_b32 s{r + 1}, s{lo + 1}')
        e(f's_mov_b32 s{r + 2}, {size}')
        e(f's_mov_b32 s{r + 3}, 0x20000')

    def kstage(stage):
        e(f's_add_u32 s{sKS}, s{sRO}, {stage}')
        e(f's_and_b32 s{sKS}, s{sKS}, 7')

    def dma_x(stage):
        def first():
            kstage(stage)
            e(f's_add_u32 m0, s{sW2K}, {XS[stage % 3] * SLOT}')
            e(f's_lshl_b32 s{sD}, s{sKS}, 7')
            e(f's_add_u32 s{sD}, s{sD}, s{sXO}')
            g.vmop(f'buffer_load_dwordx4 v{vXA0}, {srd(SX)}, s{sD} offen lds', f'st{stage}')
        g.atomic(first)
        g.vmop(f'buffer_load_dwordx4 v{vXA1}, {srd(SX)}, s{sD} offen offset:1024 lds', f'st{stage}')

    def dma_w1(tag, stage, pitch, step, slot, va, own=False):
        def f():
            if own:
                kstage(stage)
            e(f's_add_u32 m0, s{sW1K}, {slot * SLOT}')
            if step is None:
                e(f's_mul_i32 s{sD}, s{sKS}, {64 * pitch}')
                e(f's_add_u32 s{sD}, s{sD}, s{sWO_}')
            else:
                e(f's_add_u32 s{sD}, s{sD}, {step}')
            g.vmop(f'buffer_load_dwordx4 v{va}, {srd(SW1)}, s{sD} offen lds', tag)
        g.atomic(f)

    def w2slot(st):
        return st if st < 19 else st - 19

    def p2stage(st, sh):
        if st < 21:
            e(f's_cmp_ge_u32 s{sR2}, {21 - st}')
            e(f's_cselect_b32 s{sD}, {st - 21}, {st}')
            e(f's_add_u32 s{sD}, s{sD}, s{sR2}')
            e(f's_lshl_b32 s{sD}, s{sD}, {sh}')
        elif st == 21:
            e(f's_mov_b32 s{sD}, {21 << sh}')
        else:
            e(f's_add_u32 s{sD}, s{sR3}, {st - 22}')
            e(f's_and_b32 s{sD}, s{sD}, 7')
            e(f's_lshl_b32 s{sD}, s{sD}, {sh}')

    def dma_w2(st):
        def f():
            e(f's_add_u32 m0, s{sW1K}, {w2slot(st) * SLOT}')
            p2stage(st, 16)
            e(f's_add_u32 s{sD}, s{sD}, s{sW2O}')
            g.vmop(f'buffer_load_dwordx4 v{vW2A}, {srd(SW2 if st < 22 else SWO)}, s{sD} offen lds', f'w2_{st}')
        g.atomic(f)

    def w2q(sts):
        return g.capture(lambda: [dma_w2(st) for st in sts])

    e('s_cmp_ge_u32 s2, 256')
    e('s_cbranch_scc1 L_end')
    e('s_load_dwordx16 s[4:19], s[0:1], 0')
    e('s_load_dwordx8 s[20:27], s[0:1], 64')
    e('s_load_dwordx2 s[28:29], s[0:1], 96')
    if opt.get('stamps'):
        e('s_memrealtime s[96:97]')
        e('s_memtime s[98:99]')
    e(f'v_lshrrev_b32 v{ta}, 6, v0')
    e(f's_lshr_b32 s{sT1}, s2, 3')
    if opt.get('ctouch', 1):
        e(f's_getpc_b64 s[{sT2}:{sT3}]')
        e(f's_lshl_b32 s{sT0}, s{sT1}, 10')
        e(f'v_lshl_add_u32 v{tb_}, v{ta}, 7, s{sT0}')
        g.vmop(f'global_load_dword v{vTmp + 3}, v{tb_}, s[{sT2}:{sT3}]', 'touch')
    e(f'v_and_b32 v{vL}, 63, v0')
    e(f'v_readfirstlane_b32 s{sW}, v{ta}')
    TM = opt.get('touch', 3)
    sPA, sPB = SOUT, SOUT + 2
    sOA, sOB = SWO, SWO + 1
    if TM & 1:
        slots = [0, 1, 5, 7, 3, 10, 1, 5, 0, 7, 3, 12, 12, 12, 12, 12]
        tab = sum(v << (4 * i) for i, v in enumerate(slots))
        e(f's_add_u32 s{sT0}, s{sW}, s{sT1}')
        e(f's_and_b32 s{sT0}, s{sT0}, 15')
        e(f's_max_u32 s{sOA}, s{sT0}, 11')
        e(f's_sub_u32 s{sOA}, s{sOA}, 11')
        e(f's_lshl_b32 s{sOA}, s{sOA}, 21')
        e(f's_lshl_b32 s{sT0}, s{sT0}, 2')
        e(f's_mov_b32 s{sT2}, {hex(tab & 0xffffffff)}')
        e(f's_mov_b32 s{sT3}, {hex(tab >> 32)}')
        e(f's_lshr_b64 s[{sT2}:{sT3}], s[{sT2}:{sT3}], s{sT0}')
        e(f's_and_b32 s{sT2}, s{sT2}, 15')
        e(f's_lshl_b32 s{sT2}, s{sT2}, 3')
        e(f's_load_dwordx2 s[{sPA}:{sPA + 1}], s[0:1], s{sT2}')
    if TM & 2:
        e(f's_lshl_b32 s{sT0}, s{sW}, 2')
        e(f's_lshr_b32 s{sT2}, 0x69862222, s{sT0}')
        e(f's_and_b32 s{sT2}, s{sT2}, 15')
        e(f's_lshl_b32 s{sT3}, s{sT2}, 3')
        e(f's_load_dwordx2 s[{sPB}:{sPB + 1}], s[0:1], s{sT3}')
        e(f's_and_b32 s{sT0}, s{sW}, 1')
        e(f's_lshl_b32 s{sT0}, s{sT0}, 5')
        e(f's_add_u32 s{sT0}, s{sT0}, s{sT1}')
        e(f's_min_u32 s{sT0}, s{sT0}, 42')
        e(f's_and_b32 s{sOB}, s{sT1}, 15')
        e(f's_cmp_eq_u32 s{sT2}, 6')
        e(f's_cselect_b32 s{sOB}, s{sT0}, s{sOB}')
        e(f's_lshl_b32 s{sT0}, s{sT1}, 2')
        e(f's_add_u32 s{sT0}, s{sT0}, s{sW}')
        e(f's_and_b32 s{sT0}, s{sT0}, 63')
        e(f's_and_b32 s{sT3}, s2, 6')
        e(f's_lshl_b32 s{sT3}, s{sT3}, 5')
        e(f's_add_u32 s{sT0}, s{sT0}, s{sT3}')
        e(f's_cmp_eq_u32 s{sT2}, 2')
        e(f's_cselect_b32 s{sOB}, s{sT0}, s{sOB}')
        e(f's_lshl_b32 s{sOB}, s{sOB}, 6')
    e(f's_and_b32 s{sT0}, s2, 7')
    e(f's_and_b32 s{sTG}, s{sT0}, 1')
    e(f's_lshl_b32 s{sTG}, s{sTG}, 3')
    e(f's_and_b32 s{sT2}, s{sT1}, 7')
    e(f's_add_u32 s{sTG}, s{sTG}, s{sT2}')
    e(f's_lshr_b32 s{sT3}, s{sT1}, 3')
    e(f's_and_b32 s{sGRP}, s{sT0}, 6')
    e(f's_lshl_b32 s{sCGI}, s{sGRP}, 1')
    e(f's_add_u32 s{sCGI}, s{sCGI}, s{sT3}')
    e(f's_and_b32 s{sT3}, s{sT3}, 1')
    e(f's_add_u32 s{sGRP}, s{sGRP}, s{sT3}')
    e(f's_lshl_b32 s{sW1K}, s{sW}, 10')
    e(f's_lshl_b32 s{sW2K}, s{sW}, 11')
    e(f's_lshl_b32 s{sXO}, s{sTG}, 17')
    e(f's_and_b32 s{sCNT}, s{sT1}, 6')
    e(f's_add_u32 s{sT2}, s{sT0}, 1')
    e(f's_lshr_b32 s{sT2}, s{sT2}, 1')
    e(f's_add_u32 s{sCNT}, s{sCNT}, s{sT2}')
    e(f's_lshr_b32 s{sT2}, s{sT1}, 4')
    e(f's_lshl_b32 s{sT2}, s{sT2}, 2')
    e(f's_add_u32 s{sCNT}, s{sCNT}, s{sT2}')
    e(f'v_lshrrev_b32 v{ta}, 3, v{vL}')
    e(f'v_lshrrev_b32 v{tb_}, 4, v{vL}')
    e(f'v_and_b32 v{vWA2}, 7, v{vL}')
    e(f'v_xor_b32 v{vXA0}, v{vWA2}, v{tb_}')
    e(f'v_lshlrev_b32 v{vXA0}, 4, v{vXA0}')
    e(f'v_lshl_add_u32 v{vXA0}, v{ta}, 10, v{vXA0}')
    e(f's_lshl_b32 s{sT2}, s{sW}, 14')
    e(f'v_add_u32 v{vXA0}, s{sT2}, v{vXA0}')
    e(f'v_xor_b32 v{vXA1}, 64, v{vXA0}')
    e(f'v_add_u32 v{vXA1}, {8192 - 1024}, v{vXA1}')
    e(f'v_and_b32 v{tb_}, 1, v{tb_}')
    e(f'v_lshlrev_b32 v{tb_}, 2, v{tb_}')
    e(f'v_xor_b32 v{vWA2}, v{vWA2}, v{tb_}')
    e(f'v_lshlrev_b32 v{vWA2}, 4, v{vWA2}')
    e(f'v_lshrrev_b32 v{ta}, 3, v0')
    e(f'v_lshl_add_u32 v{vW2A}, v{ta}, 10, v{vWA2}')
    e(f'v_lshlrev_b32 v{vL16}, 4, v{vL}')
    e(f's_mov_b32 s{SX + 2}, {2048 * 1024}')
    e(f's_mov_b32 s{SX + 3}, 0x20000')
    e(f's_mov_b32 s{SW1 + 3}, 0x20000')
    e('s_waitcnt lgkmcnt(0)')
    if opt.get('stamps'):
        e('s_mov_b32 s80, s98')
    def nst(k):
        if opt.get('pst'):
            e(f's_memtime s[{82 + 2 * k}:{83 + 2 * k}]')
    nst(0)
    if TM & 1:
        e(f's_load_dword s100, s[{sPA}:{sPA + 1}], s{sOA}')
    if TM & 2:
        e(f's_load_dword s101, s[{sPB}:{sPB + 1}], s{sOB}')
    e(f's_mov_b32 s{SX}, s4')
    e(f's_mov_b32 s{SX + 1}, s5')
    e(f's_mov_b32 s{sRO}, s{sCNT}' if opt.get('rot', 1) else f's_mov_b32 s{sRO}, 0')
    dma_x(0)
    nst(1)
    e(f's_load_dword s{sTAG}, s[28:29], {WS_E}')
    e(f's_bitcmp1_b32 s{sCGI}, 1')
    e('s_cbranch_scc0 L_qkv')
    vm_common = list(g.vm)

    FW = {2: 4, 0: 13, 1: 16}
    QW = {2: 4, 0: 0, 1: 2}

    def f_stage_w(s):
        for j in range(3):
            dma_w1(f'st{s}', s, 2752, 128 if j else None, FW[s % 3] + j, vWA if j < 2 else vWA2)

    def q_stage_w(s):
        dma_w1(f'st{s}', s, 3072, None, QW[s % 3], vWA2)
        dma_w1(f'st{s}', s, 3072, 1024, QW[s % 3] + 1, vWA2)

    e(f's_mov_b32 s{SW1}, s14')
    e(f's_mov_b32 s{SW1 + 1}, s15')
    e(f's_mov_b32 s{SW1 + 2}, {512 * 2752}')
    e(f's_movk_i32 s{sT2}, 2752')
    e(f'v_mad_u32_u24 v{vWA}, v{ta}, s{sT2}, v{vWA2}')
    e(f's_mul_i32 s{sT2}, s{sGRP}, 43')
    e(f's_add_u32 s{sT3}, s{sT2}, 50')
    e(f's_add_u32 s{sT2}, s{sT2}, 7')
    e(f's_lshr_b32 s{sT2}, s{sT2}, 3')
    e(f's_lshr_b32 s{sT3}, s{sT3}, 3')
    e(f's_sub_u32 s{sT3}, s{sT3}, s{sT2}')
    e(f's_lshl_b32 s{sWO_}, s{sT2}, 6')
    e(f'v_cmp_lt_u32 vcc, 63, v{vWA2}')
    e(f's_cmp_eq_u32 s{sT3}, 5')
    e(f's_cselect_b32 s3, {OOB}, 0')
    e(f'v_mov_b32 v{tb_}, s3')
    e(f'v_cndmask_b32 v{tb_}, 0, v{tb_}, vcc')
    e(f'v_add_u32 v{vWA2}, v{vWA}, v{tb_}')
    f_stage_w(0)
    nst(2)
    e('s_branch L_ffn')
    vm_ffn = list(g.vm)

    def setup_common():
        e(f's_lshl_b32 s{sTT}, s{sT0}, 2')
        e(f's_lshr_b32 s{sT2}, s{sT1}, 3')
        e(f's_add_u32 s{sTT}, s{sTT}, s{sT2}')
        e(f's_and_b32 s{sT2}, s{sT1}, 1')
        e(f's_lshl_b32 s{sT2}, s{sT2}, 1')
        e(f's_xor_b32 s{sTT}, s{sTT}, s{sT2}')
        e(f's_and_b32 s{sW2O}, s{sT1}, 7')
        e(f's_lshl_b32 s{sW2O}, s{sW2O}, 7')
        e(f's_mov_b32 s{sC}, {hex(LOG2E)}')
        e(f's_mul_i32 s{sR2}, s{sT0}, {opt.get("r2a", 21)}')
        e(f's_lshr_b32 s{sT2}, s{sT1}, {opt.get("r2s", 3)}')
        e(f's_mul_i32 s{sR3}, s{sT2}, {opt.get("r2b", 0)}')
        e(f's_add_u32 s{sR2}, s{sR2}, s{sR3}')
        e(f's_lshr_b32 s{sR2}, s{sR2}, 3')
        e(f's_cmp_ge_u32 s{sR2}, 21')
        e(f's_cselect_b32 s{sR3}, 21, 0')
        e(f's_sub_u32 s{sR2}, s{sR2}, s{sR3}')
        e(f's_mul_i32 s{sR3}, s{sT0}, {opt.get("r3a", 1)}')
        mksrd(SW2, 18, 1376 * 1024)
        mksrd(SWO, 10, 512 * 1024)
        mksrd(SWS, 28, WS_SIZE)
        mksrd(SOUT, 24, 2048 * 1024)
        a, b, d = ta, tb_, td
        e(f'v_and_b32 v{a}, 31, v{vL}')
        e(f'v_bfe_u32 v{b}, v{vL}, 1, 3')
        e(f'v_lshrrev_b32 v{d}, 5, v{vL}')
        e(f'v_lshlrev_b32 v{d}, 1, v{d}')
        e(f'v_xor_b32 v{b}, v{b}, v{d}')
        e(f'v_lshlrev_b32 v{b}, 4, v{b}')
        e(f'v_lshl_add_u32 v{b}, v{a}, 7, v{b}')
        e(f's_and_b32 s{sT0}, s{sW}, 3')
        e(f's_lshl_b32 s{sT0}, s{sT0}, 12')
        e(f's_add_u32 s{sT0}, s{sT0}, {XBASE}')
        e(f'v_add_u32 v{vXR}, s{sT0}, v{b}')
        e(f'v_xor_b32 v{vXR + 1}, 16, v{vXR}')
        e(f'v_xor_b32 v{vXR + 2}, 64, v{vXR}')
        e(f'v_xor_b32 v{vXR + 3}, 0x50, v{vXR}')
        e(f'v_and_b32 v{a}, 3, v{vL}')
        e(f'v_lshlrev_b32 v{a}, 3, v{a}')
        e(f'v_bfe_u32 v{b}, v{vL}, 4, 1')
        e(f'v_lshl_add_u32 v{a}, v{b}, 5, v{a}')
        e(f'v_bfe_u32 v{b}, v{vL}, 3, 1')
        e(f'v_lshl_add_u32 v{a}, v{b}, 6, v{a}')
        e(f'v_bfe_u32 v{b}, v{vL}, 2, 2')
        e(f'v_lshl_add_u32 v{a}, v{b}, 7, v{a}')
        e(f'v_lshrrev_b32 v{b}, 5, v{vL}')
        e(f'v_lshl_add_u32 v{vT + 3}, v{b}, 9, v{a}')
        e(f'v_lshl_add_u32 v{a}, v{b}, 11, v{a}')
        e(f's_lshr_b32 s{sT0}, s{sW}, 2')
        e(f's_lshl_b32 s{sT0}, s{sT0}, 6')
        e(f'v_xor_b32 v{vT}, s{sT0}, v{a}')
        e(f'v_add_u32 v{vT + 1}, 0x10000, v{vT}')
        e(f'v_add_u32 v{vT + 2}, 0x20000, v{vT}')
        e(f's_lshl_b32 s{sT0}, s{sTT}, 1')
        e(f's_lshr_b32 s{sT1}, s{sW}, 2')
        e(f's_add_u32 s{sT0}, s{sT0}, s{sT1}')
        e(f's_mul_i32 s{sT0}, s{sT0}, {ACT_TB}')
        e(f's_and_b32 s{sT1}, s{sW1K}, 0xc00')
        e(f's_add_u32 s{sT0}, s{sT0}, s{sT1}')
        e(f'v_add_u32 v{vHA}, s{sT0}, v{vL16}')

    def make_tag():
        e(f's_mul_i32 s{sTAG}, s{sTAG}, 1664525')
        e(f's_add_u32 s{sTAG}, s{sTAG}, 1013904223')
        e(f's_xor_b32 s{sTAG + 1}, s{sTAG}, 0x9e3779b9')

    def trd(dst, base, slot, ks, v, tag):
        off = slot * SLOT + ((32 * (ks >> 1) + 8 * (ks & 1) + 4 * v) * 128 if ks is not None else 1024 * v)
        g.ds(f'ds_read_b64_tr_b16 {vr(dst + 2 * v, 2)}, v{base + (off >> 16)} offset:{off & 0xffff}', tag)

    def mfma(d, a, b, cc):
        e(f'v_mfma_f32_32x32x16_bf16 {vr(d, 16)}, {vr(a, 4)}, {vr(b, 4)}, {cc if isinstance(cc, str) else vr(cc, 16)}')

    def mainloop(nW, xreg, wreg, wslot, mm, dmaq, fills):
        def reads(n, j):
            s, ks = n >> 2, n & 3
            if j == 0:
                g.ds(f'ds_read_b128 {vr(xreg(n), 4)}, v{vXR + ks} offset:{XS[s % 3] * SLOT - XBASE}', f'r{n}_0')
            for v in range(2):
                trd(wreg(n, j), vT, wslot(s) + j, ks, v, f'r{n}_{j}')
        if opt.get('nodma'):
            dmaq = {k: [] for k in dmaq}
        if opt.get('nomm'):
            mm = lambda n, j: None
        if opt.get('nords'):
            reads = lambda n, j: None
        for n in range(2):
            for j in range(nW):
                reads(n, j)
        cur, left, tot, done = dmaq[0], 3 * nW, len(dmaq[0]), 0
        span = left
        for n in range(32):
            s, ks = n >> 2, n & 3
            fq = fills.get(n, [])
            nf = len(fq)
            for j in range(nW):
                g.wait(lg=f'r{n}_{j}')
                mm(n, j)
                if ks != 2 and n + 2 < 32:
                    reads(n + 2, j)
                if left:
                    left -= 1
                    k = -(-(span - left) * tot // span) - done
                    g.play(cur, k)
                    done += k
                g.play(fq, (j + 1) * nf // nW - j * nf // nW)
            if ks == 2:
                assert not cur
                g.wait(vm=f'st{s + 1}', lg='all')
                e('s_barrier')
                cur = dmaq[s + 1] if s + 1 < 8 else []
                tot, done, span, left = len(cur), 0, 4 * nW, 4 * nW
                if n + 2 < 32:
                    for j in range(nW):
                        reads(n + 2, j)

    def publish():
        l = g.newlab('pub')
        e(f's_cmp_lg_u32 s{sW}, 0')
        e(f's_cbranch_scc1 {l}')
        e(f'v_mov_b32 v{vPR}, s{sTAG}')
        e(f'v_mov_b32 v{vPR + 1}, s{sTAG + 1}')
        e('s_mov_b64 exec, 1')
        g.vmop(f'buffer_store_dwordx2 {vr(vPR, 2)}, v{vL16}, {srd(SWS)}, s{sT1} offen sc1', 'flag', cond=True)
        e('s_mov_b64 exec, -1')
        g.lab(l)

    def p1flag_off():
        e(f's_lshl_b32 s{sT1}, s{sTG}, 4')
        e(f's_add_u32 s{sT1}, s{sT1}, s{sCGI}')
        e(f's_lshl_b32 s{sT1}, s{sT1}, 7')
        e(f's_add_u32 s{sT1}, s{sT1}, {WS_FP1}')

    def xm(mask):
        return '-1' if mask == -1 else hex(mask)

    def probe(mask, cond=False):
        def f():
            e(f's_mov_b64 exec, {xm(mask)}')
            g.vmop(f'buffer_load_dwordx2 {vr(vPR, 2)}, v{vFO}, {srd(SWS)}, s{sFL} offen sc1', 'probe', cond)
            e('s_mov_b64 exec, -1')
        g.atomic(f)

    def check(mask):
        l, x = g.newlab('poll'), g.newlab('pollx')
        e(f's_mov_b32 s{sCNT}, 0')
        e(f's_mov_b64 exec, {xm(mask)}')
        g.wait(vm='probe')
        g.lab(l)
        e(f'v_cmp_ne_u64 vcc, s[{sTAG}:{sTAG + 1}], {vr(vPR, 2)}')
        e(f's_cbranch_vccz {x}')
        e(f'buffer_load_dwordx2 {vr(vPR, 2)}, v{vFO}, {srd(SWS)}, s{sFL} offen sc1')
        e(f's_add_u32 s{sCNT}, s{sCNT}, 1')
        e(f's_cmp_lt_u32 s{sCNT}, 0x40000')
        e('s_waitcnt vmcnt(0)')
        e(f's_cbranch_scc1 {l}')
        g.lab(x)
        e('s_mov_b64 exec, -1')

    def softmax(P, O, t):
        e(f'v_max3_f32 v{t}, v{P}, v{P + 1}, v{P + 2}')
        e(f'v_max3_f32 v{t + 1}, v{P + 3}, v{P + 4}, v{P + 5}')
        for i in range(6, 16, 2):
            k = t + ((i >> 1) & 1)
            e(f'v_max3_f32 v{k}, v{k}, v{P + i}, v{P + i + 1}')
        e(f'v_max_f32 v{t}, v{t}, v{t + 1}')
        e(f'v_mul_f32 v{t}, s{sC}, v{t}')
        for i in range(0, 16, 2):
            e(f'v_pk_fma_f32 {vr(P + i, 2)}, {vr(P + i, 2)}, s[{sC}:{sC + 1}], {vr(t, 2)} op_sel_hi:[1,0,0] neg_lo:[0,0,1] neg_hi:[0,0,1]')
        for i in range(16):
            e(f'v_exp_f32 v{P + i}, v{P + i}')
            if i == 5:
                e(f'v_pk_add_f32 {vr(t, 2)}, {vr(P, 2)}, {vr(P + 2, 2)}')
            if i > 5 and i & 1:
                e(f'v_pk_add_f32 {vr(t, 2)}, {vr(t, 2)}, {vr(P + i - 3, 2)}')
        e(f'v_pk_add_f32 {vr(t, 2)}, {vr(t, 2)}, {vr(P + 14, 2)}')
        e(f'v_add_f32 v{t}, v{t}, v{t + 1}')
        e(f'v_rcp_f32 v{t}, v{t}')
        g.nop(1)
        for i in range(0, 16, 2):
            e(f'v_pk_mul_f32 {vr(P + i, 2)}, {vr(P + i, 2)}, {vr(t, 2)} op_sel_hi:[1,0]')
        for i in range(8):
            e(f'v_cvt_pk_bf16_f32 v{O + i}, v{P + 2 * i}, v{P + 2 * i + 1}')

    def pack16(dst, src):
        for i in range(8):
            e(f'v_cvt_pk_bf16_f32 v{dst + i}, v{src + 2 * i}, v{src + 2 * i + 1}')

    def p2_bases():
        e(f's_and_b32 s{sT0}, s{sW2K}, 0x1800')
        e('s_nop 1')
        e(f'v_add_u32 v{vT + 3}, s{sT0}, v{vT + 3}')
        e(f'v_add_u32 v{vT + 4}, 0x10000, v{vT + 3}')
        e(f'v_add_u32 v{vT + 5}, 0x20000, v{vT + 3}')
        e(f'v_xor_b32 v{vU}, 64, v{vT + 3}')
        e(f'v_add_u32 v{vU + 1}, 0x10000, v{vU}')
        e(f'v_add_u32 v{vU + 2}, 0x20000, v{vU}')
        e(f'v_lshlrev_b32 v{vFO}, 7, v{vL}')

    def p2_wread(dst, st):
        for nb in range(2):
            for v in range(2):
                trd(dst + 4 * nb, vU if nb else vT + 3, w2slot(st), None, v, f'w{st}')

    def w2_move():
        for st in range(11):
            p2_wread(vWR + 8 * st, st)

    def colperm_addr(dst):
        e(f'v_lshrrev_b32 v{td}, 5, v{vL}')
        e(f'v_lshlrev_b32 v{td}, 28, v{td}')
        e(f'v_lshl_add_u32 v{dst}, v{vL}, 1, v{td}')

    vAB, vAA = 32, 64
    vH = 216
    NH = 10
    NL = opt.get('nl', 5)
    vWL = 96
    vB2 = 112
    vCP = 25

    def fl_p1():
        e(f's_lshr_b32 s{sFL}, s{sTT}, 1')
        e(f's_lshl_b32 s{sFL}, s{sFL}, 11')
        e(f's_add_u32 s{sFL}, s{sFL}, {WS_FP1}')

    def p2_bias():
        mksrd(SSM, 20, 1024)
        e(f's_and_b32 s{sT2}, s{sW}, 3')
        e(f's_cselect_b32 s{sT0}, {OOB}, 0')
        e(f's_add_u32 s{sT0}, s{sT0}, s{sW2O}')
        for i in range(2):
            g.vmop(f'buffer_load_ushort v{vB2 + 4 * i}, v{vCP}, {srd(SSM)}, s{sT0} offen offset:{64 * i}', 'b2')
            for k in range(1, 4):
                e(f'v_mov_b32 v{vB2 + 4 * i + k}, 0')
        for k in range(4):
            e(f'v_mov_b32 v{vB2 + 8 + k}, 0x3f803f80')
        e(f's_cmp_ge_u32 s{sT2}, 2')
        e(f's_cselect_b32 s3, {OOB}, 0')
        e(f's_add_u32 s3, s3, {WS_ACT + 21 * 4096}')

    def hreg(st):
        return vH + 4 * (st % NH) if st < 22 else vWR + 4 * (st - 22)

    def hload(st):
        if st == 21:
            g.vmop(f'buffer_load_dwordx4 {vr(hreg(st), 4)}, v{vHA}, {srd(SWS)}, s3 offen sc1', f'h{st}')
        else:
            p2stage(st, 12)
            e(f's_add_u32 s{sD}, s{sD}, {WS_ACT + (0 if st < 22 else 22 * 4096)}')
            g.vmop(f'buffer_load_dwordx4 {vr(hreg(st), 4)}, v{vHA}, {srd(SWS)}, s{sD} offen sc1', f'h{st}')

    g.lab('L_qkv')
    g.vm = list(vm_common)
    c('================ QKV workgroup')
    vX = 128
    vAK, vAV = 32, 48
    vF = 64
    vSEL, vAPHI = 80, 88
    vSA, vZS = 20, 24
    e(f's_mov_b32 s{SW1}, s6')
    e(f's_mov_b32 s{SW1 + 1}, s7')
    e(f's_mov_b32 s{SW1 + 2}, {512 * 3072}')
    e(f's_movk_i32 s{sT2}, 3072')
    e(f'v_mad_u32_u24 v{vWA}, v{ta}, s{sT2}, v{vWA2}')
    e(f's_lshl_b32 s{sWO_}, s{sGRP}, 7')
    e(f'v_add_u32 v{vWA2}, 1024, v{vWA}')
    q_stage_w(0)
    nst(2)
    l = g.newlab('wphi')
    e(f's_cmp_gt_u32 s{sW}, 1')
    e(f's_cbranch_scc1 {l}')
    mksrd(SSM, 8, 32 * 512)
    e(f's_add_u32 m0, s{sW1K}, {L_WPHI}')
    e(f's_lshl_b32 s{sT2}, s{sGRP}, 11')
    e(f's_add_u32 s{sT2}, s{sT2}, s{sW1K}')
    g.vmop(f'buffer_load_dwordx4 v{vL16}, {srd(SSM)}, s{sT2} offen lds', 'st0', cond=True)
    g.lab(l)
    setup_common()
    nst(3)
    e('s_barrier')
    dma_x(1)
    q_stage_w(1)
    nst(4)
    g.stamp(1)
    g.wait(vm='st0')
    nst(5)
    g.wait(lg='all')
    e('s_barrier')
    g.stamp(2)

    def q_consts():
        a, b, d = ta, tb_, td
        make_tag()
        e(f'v_bfe_u32 v{a}, v{vL}, 2, 2')
        e(f'v_lshlrev_b32 v{a}, 5, v{a}')
        e(f'v_bfe_u32 v{b}, v{vL}, 4, 1')
        e(f'v_lshl_add_u32 v{a}, v{b}, 4, v{a}')
        e(f'v_bfe_u32 v{b}, v{vL}, 1, 1')
        e(f'v_lshl_add_u32 v{a}, v{b}, 3, v{a}')
        e(f'v_lshrrev_b32 v{b}, 5, v{vL}')
        e(f'v_lshl_add_u32 v{a}, v{b}, 7, v{a}')
        e(f's_lshr_b32 s{sT0}, s{sW}, 2')
        e(f's_lshl_b32 s{sT0}, s{sT0}, 10')
        e(f's_add_u32 s{sT0}, s{sT0}, {L_WPHI}')
        e(f'v_add_u32 v{a}, s{sT0}, v{a}')
        for h in range(2):
            for v in range(2):
                g.ds(f'ds_read_b64_tr_b16 {vr(vAPHI + 4 * h + 2 * v, 2)}, v{a} offset:{512 * h + 256 * v}', 'aphi')
        e(f'v_bfe_u32 v{a}, v{vL}, 2, 1')
        e(f'v_cmp_eq_u32 s[{sVAL}:{sVAL + 1}], v{a}, v{b}')
        e(f'v_mul_u32_u24 v{vZS}, 0x8000, v{a}')
        e(f'v_lshl_add_u32 v{vZS}, v{vZS}, 16, v{vZS}')
        e(f'v_bfe_u32 v{a}, v{vL}, 3, 2')
        e(f'v_lshlrev_b32 v{a}, 1, v{a}')
        e(f'v_bfe_u32 v{b}, v{vL}, 1, 1')
        e(f'v_add_u32 v{a}, v{a}, v{b}')
        e(f'v_and_b32 v{b}, 1, v{vL}')
        e(f'v_lshlrev_b32 v{b}, 4, v{b}')
        e(f'v_mov_b32 v{d}, 0x3f80')
        e(f'v_lshlrev_b32 v{d}, v{b}, v{d}')
        e(f'v_cndmask_b32 v{d}, 0, v{d}, s[{sVAL}:{sVAL + 1}]')
        for q in range(8):
            e(f'v_cmp_eq_u32 vcc, {q}, v{a}')
            g.nop(2)
            e(f'v_cndmask_b32 v{vSEL + q}, 0, v{d}, vcc')
        g.wait(lg='aphi')
        for i in range(8):
            e(f'v_xor_b32 v{vAPHI + i}, v{vZS}, v{vAPHI + i}')
        e(f's_mov_b32 s{sVAL}, 0xffff')
        e(f's_mov_b32 s{sVAL + 1}, 0xffff')
        e(f'v_bfe_u32 v{a}, v{vL}, 1, 2')
        e(f'v_lshrrev_b32 v{d}, 5, v{vL}')
        e(f'v_xor_b32 v{b}, v{vL}, v{d}')
        e(f'v_and_b32 v{b}, 1, v{b}')
        e(f'v_lshl_add_u32 v{a}, v{b}, 2, v{a}')
        e(f'v_lshlrev_b32 v{a}, 4, v{a}')
        e(f'v_and_b32 v{b}, 31, v{vL}')
        e(f'v_lshl_add_u32 v{a}, v{b}, 7, v{a}')
        e(f's_lshl_b32 s{sT0}, s{sW}, 12')
        e(f's_add_u32 s{sT0}, s{sT0}, {7 * SLOT}')
        e(f'v_add_u32 v{vSA}, s{sT0}, v{a}')
        for j in range(1, 4):
            e(f'v_xor_b32 v{vSA + j}, {16 * j}, v{vSA}')
        e(f'v_lshlrev_b32 v{d}, 7, v{d}')
        e(f'v_bfe_u32 v{a}, v{vL}, 2, 1')
        e(f'v_lshl_add_u32 v{d}, v{a}, 6, v{d}')
        e(f'v_bfe_u32 v{a}, v{vL}, 3, 2')
        e(f'v_lshl_add_u32 v{d}, v{a}, 4, v{d}')
        e(f'v_and_b32 v{a}, 3, v{vL}')
        e(f'v_lshl_add_u32 v{d}, v{a}, 2, v{d}')
        e(f's_lshl_b32 s{sT0}, s{sW}, 8')
        e(f's_add_u32 s{sT0}, s{sT0}, {L_ZS}')
        e(f'v_add_u32 v{vZS}, s{sT0}, v{d}')
        e(f'v_lshlrev_b32 v{a}, 1, v{a}')
        e(f'v_bfe_u32 v{b}, v{vL}, 3, 2')
        e(f'v_xor_b32 v{a}, v{a}, v{b}')
        e(f'v_and_b32 v{b}, 4, v{vL}')
        e(f'v_xor_b32 v{a}, v{a}, v{b}')
        e(f'v_lshlrev_b32 v{a}, 4, v{a}')
        e(f'v_lshrrev_b32 v{b}, 2, v{vL}')
        e(f'v_lshl_add_u32 v{a}, v{b}, 7, v{a}')
        e(f's_lshr_b32 s{sT0}, s{sW}, 1')
        e(f's_lshl_b32 s{sT0}, s{sT0}, 14')
        e(f's_and_b32 s{sT1}, s{sW2K}, 0x800')
        e(f's_add_u32 s{sT0}, s{sT0}, s{sT1}')
        e(f's_add_u32 s{sT0}, s{sT0}, {7 * SLOT}')
        e(f'v_add_u32 v{vM}, s{sT0}, v{a}')
        colperm_addr(vCP)
        e(f's_lshl_b32 s{sT0}, s{sGRP}, 4')
        e(f's_add_u32 s{sT0}, s{sT0}, s{sTG}')
        e(f's_mul_i32 s{sK1}, s{sT0}, {KVP_SZ}')
        e(f's_add_u32 s{sK1}, s{sK1}, s{sW1K}')
        e(f's_add_u32 s{sK1}, s{sK1}, {WS_KVP}')
        e(f's_lshl_b32 s{sT0}, s{sTG}, 2')
        e(f's_and_b32 s{sT1}, s{sW}, 3')
        e(f's_add_u32 s{sT0}, s{sT0}, s{sT1}')
        e(f's_mul_i32 s{sACT}, s{sT0}, {ACT_TB}')
        e(f's_lshl_b32 s{sT0}, s{sGRP}, 12')
        e(f's_add_u32 s{sACT}, s{sACT}, s{sT0}')
        e(f's_lshr_b32 s{sT0}, s{sW}, 2')
        e(f's_lshl_b32 s{sT0}, s{sT0}, 11')
        e(f's_add_u32 s{sACT}, s{sACT}, s{sT0}')
        e(f's_add_u32 s{sACT}, s{sACT}, {WS_ACT + 88 * 1024}')
        e(f's_lshl_b32 s{sFL}, s{sGRP}, 11')
        e(f's_add_u32 s{sFL}, s{sFL}, {WS_FKV}')

    def spread(q, n0, n1):
        t = len(q)
        return {n: q[(n - n0) * t // (n1 - n0):(n - n0 + 1) * t // (n1 - n0)] for n in range(n0, n1)}

    def qslot(s):
        return 13 + s if s < 6 else 5 + s

    def dma_q(s):
        dma_w1(f'q{s}', s, 3072, None, qslot(s), vWA, own=True)

    dmaq = {s: g.capture(lambda: (dma_x(s + 2), q_stage_w(s + 2))) for s in range(6)}
    dmaq[6] = g.capture(lambda: [dma_q(s) for s in range(4)])
    dmaq[7] = []

    QB = [64, 72, 96]

    def q_mm(n, j):
        buf = QB[n % 3]
        if j == 0:
            mfma(vAK, buf, vX + 4 * n, '0' if n == 0 else vAK)
        else:
            mfma(vAV, vX + 4 * n, buf + 4, '0' if n == 0 else vAV)

    mainloop(2, lambda n: vX + 4 * n, lambda n, j: QB[n % 3] + 4 * j, lambda s: QW[s % 3], q_mm, dmaq,
             spread(g.capture(q_consts), 1, 28))
    g.stamp(3)
    vKB, vB0, vB1 = 64, 64, 72
    vE, vP0, vP1 = 96, 112, 120
    def kdma():
        for s_ in range(4, 8):
            dma_q(s_)
        for st in range(7):
            dma_w2(st)
    g.half('y', kdma)
    g.nop(10)
    pack16(vKB, vAK)
    mfma(vAK, vAPHI, vKB, '0')
    g.nop(1)
    mfma(vE, vAPHI + 4, vKB + 4, '0')
    pack16(vB1, vAV)
    for i in range(8):
        e(f'v_cndmask_b32 v{vB0 + i}, 0, v{vB1 + i}, s[{sVAL}:{sVAL + 1}]')
    softmax(vAK, vP0, ta)
    e(f'v_xor_b32 v{vB1}, v{vB0}, v{vB1}')
    mfma(vAK, vP0, vSEL, '0')
    mfma(vAK, vP0 + 4, vSEL + 4, vAK)
    for i in range(1, 8):
        e(f'v_xor_b32 v{vB1 + i}, v{vB0 + i}, v{vB1 + i}')
    softmax(vE, vP1, ta)
    e(f'v_add_f32 v{ta}, v{vAK}, v{vAK + 1}')
    mfma(vE, vP1, vSEL, '0')
    mfma(vE, vP1 + 4, vSEL + 4, vE)
    pack16(vP0, vAK)
    e(f'v_add_f32 v{ta}, v{ta}, v{vAK + 2}')
    e(f'v_add_f32 v{ta}, v{ta}, v{vAK + 3}')
    mfma(vAV, vP0, vB0, '0')
    mfma(vAV, vP0 + 4, vB0 + 4, vAV)
    pack16(vP1, vE)
    e(f'v_add_f32 v{tb_}, v{vE}, v{vE + 1}')
    e(f'v_add_f32 v{tb_}, v{tb_}, v{vE + 2}')
    mfma(vAV, vP1, vB1, vAV)
    mfma(vAV, vP1 + 4, vB1 + 4, vAV)
    e(f'v_add_f32 v{tb_}, v{tb_}, v{vE + 3}')
    for i in range(4, 16):
        e(f'v_add_f32 v{ta}, v{ta}, v{vAK + i}')
        e(f'v_add_f32 v{tb_}, v{tb_}, v{vE + i}')
        if i >= 12:
            g.ds(f'ds_write_b128 v{vSA + i - 12}, {vr(vAV + 4 * (i - 12), 4)}', 'sc')
    g.nop(1)
    e(f'v_permlane32_swap_b32 v{ta}, v{tb_}')
    g.nop(1)
    e(f'v_add_f32 v{ta}, v{ta}, v{tb_}')
    g.ds(f'ds_write_b32 v{vZS}, v{ta}', 'sc')
    g.stamp('ke')
    g.half('o', kdma)
    g.half('y', lambda: g.wait(vm='q7'))
    g.wait(vm='q3', lg='all')
    e('s_barrier')
    g.stamp(4)
    lr, lz, lj = g.newlab('red'), g.newlab('redz'), g.newlab('redj')
    a, b, d = ta, tb_, td
    e(f's_cmp_gt_u32 s{sW}, 3')
    e(f's_cbranch_scc1 {lz}')
    e(f'v_xor_b32 v{b}, 16, v{vM}')
    for tb in range(4):
        e(f'ds_read_b128 {vr(vE + 8 * tb, 4)}, v{vM} offset:{tb * 4096}')
        e(f'ds_read_b128 {vr(vE + 8 * tb + 4, 4)}, v{b} offset:{tb * 4096}')
    g.lab(lj)
    e('s_waitcnt lgkmcnt(4)')
    for i in range(8):
        e(f'v_add_f32 v{vE + i}, v{vE + i}, v{vE + 8 + i}')
    e('s_waitcnt lgkmcnt(0)')
    for i in range(8):
        e(f'v_add_f32 v{vE + 16 + i}, v{vE + 16 + i}, v{vE + 24 + i}')
    for i in range(8):
        e(f'v_add_f32 v{vE + i}, v{vE + i}, v{vE + 16 + i}')
    for i in range(4):
        e(f'v_cvt_pk_bf16_f32 v{vE + 8 + i}, v{vE + 2 * i}, v{vE + 2 * i + 1}')
    g.vmop(f'buffer_store_dwordx4 {vr(vE + 8, 4)}, v{vL16}, {srd(SWS)}, s{sK1} offen sc1', 'kvst', cond='o')
    g.vm.append(('kvst', True))
    e('s_mov_b64 exec, -1')
    e(f's_branch {lr}')
    g.lab(lz)
    e(f's_cmp_gt_u32 s{sW}, 4')
    e(f's_cbranch_scc1 {lr}')
    e(f'v_bfe_u32 v{a}, v{vL}, 3, 1')
    e(f'v_lshlrev_b32 v{a}, 10, v{a}')
    e(f'v_bfe_u32 v{b}, v{vL}, 2, 1')
    e(f'v_lshl_add_u32 v{a}, v{b}, 7, v{a}')
    e(f'v_and_b32 v{b}, 3, v{vL}')
    e(f'v_lshl_add_u32 v{a}, v{b}, 5, v{a}')
    e(f'v_add_u32 v{a}, {L_ZS}, v{a}')
    e('s_mov_b64 exec, 0xffff')
    for tb in range(4):
        e(f'ds_read_b128 {vr(vE + 8 * tb, 4)}, v{a} offset:{tb * 256}')
        e(f'ds_read_b128 {vr(vE + 8 * tb + 4, 4)}, v{a} offset:{tb * 256 + 16}')
    e(f's_branch {lj}')
    g.lab(lr)

    def qq_reads(n):
        for v in range(2):
            trd(vF + 4 * (n % 4), vT, qslot(n >> 2), n & 3, v, f'q{n}')

    p2_bases()
    for n in range(3):
        qq_reads(n)
    dq = []
    for n in range(32):
        if n + 3 < 32:
            qq_reads(n + 3)
        g.wait(lg=f'q{n}')
        mfma(vAK, vF + 4 * (n % 4), vX + 4 * n, '0' if n == 0 else vAK)
        if n == 7:
            g.stamp('q7')
            g.wait(vm='q7')
            e('s_barrier')
            g.stamp('q7b')
            dq = w2q([7, 8, 9, 10, 13, 14])
        if n == 23:
            e(f's_lshl_b32 s{sT1}, s{sTG}, 7')
            e(f's_add_u32 s{sT1}, s{sT1}, s{sFL}')
            g.stamp('q23')
            g.wait(vm='kvst')
            e('s_barrier')
            g.stamp('q23b')
            publish()
            dq += w2q([15, 16, 17])
        if n in (7, 10, 12, 15, 18, 21, 24, 27, 30):
            g.play(dq, 1)
    assert not dq
    g.wait(vm='w2_10')
    e('s_barrier')
    g.stamp(5)
    rest = [18, 11, 12] + list(range(19, 30))

    def move():
        w2_move()
        g.wait(lg='all')
    g.half('y', lambda: ([dma_w2(st) for st in rest[:3]], move()))
    g.nop(8)
    pack16(vKB, vAK)
    mfma(vAK, vAPHI, vKB, '0')
    g.nop(1)
    mfma(vE, vAPHI + 4, vKB + 4, '0')
    g.half('o', lambda: probe(0xffff))
    e(f'v_lshrrev_b32 v{td}, 2, v{vL}')
    e(f'v_mul_u32_u24 v{td}, {KVP_SZ - 64}, v{td}')
    e(f'v_add_u32 v{td}, v{td}, v{vL16}')
    e(f's_mul_i32 s{sT0}, s{sGRP}, {16 * KVP_SZ}')
    e(f's_add_u32 s{sT0}, s{sT0}, {WS_KVP}')
    e(f's_lshl_b32 s{sT1}, s{sW}, 6')
    e(f's_add_u32 s{sT1}, s{sT1}, s{sT0}')
    e(f's_add_u32 s{sT1}, s{sT1}, 4096')
    e(f's_add_u32 s{sT0}, s{sT0}, s{sW1K}')
    softmax(vAK, vP0, ta)
    softmax(vE, vP1, ta)
    g.stamp(6)
    vGA = [32 + 4 * p for p in range(12)] + [216 + 4 * p for p in range(5)]
    vS = 96
    a, b, d = ta, tb_, td

    def gather():
        check(0xffff)
        g.stamp(7)
        mv = g.capture(w2_move)
        g.vmop(f'buffer_load_dwordx4 {vr(vGA[16], 4)}, v{td}, {srd(SWS)}, s{sT1} offen sc1', 'ga')
        e(f'v_and_b32 v{b}, 0x30, v{vL}')
        e(f'v_xor_b32 v{b}, v{b}, v{vL16}')
        e(f's_add_u32 s{sT1}, s{sW2K}, {L_TAB}')
        e(f'v_add_u32 v{b}, s{sT1}, v{b}')
        LAG = 9

        def acc(p):
            g.wait(vm=f'ga{p}')
            mfma(vS, vSEL, vGA[p], '0' if p == 0 else vS)
        for p in range(16):
            g.vmop(f'buffer_load_dwordx4 {vr(vGA[p], 4)}, v{vL16}, {srd(SWS)}, s{sT0} offen sc1', f'ga{p}')
            if p < 15:
                e(f's_add_u32 s{sT0}, s{sT0}, {KVP_SZ}')
            g.play(mv, 3)
            if p >= LAG:
                acc(p - LAG)
        g.wait(lg='all')
        g.stamp('gi')
        e('s_barrier')
        e(f'ds_write_b128 v{b}, {vr(vGA[16], 4)} offset:1024')
        for p in range(16 - LAG, 16):
            acc(p)
        g.stamp('gd')
        g.nop(12)
        for i in range(4):
            e(f'v_cvt_pk_bf16_f32 v{vS + 8 + i}, v{vS + 2 * i}, v{vS + 2 * i + 1}')
        e(f'ds_write_b128 v{b}, {vr(vS + 8, 4)}')
    g.half('o', gather)
    qa = opt.get('qa', 9)
    g.half('y', lambda: (e('s_barrier'), [dma_w2(st) for st in rest[3:qa]]))
    e(f'v_lshrrev_b32 v{d}, 5, v{vL}')
    e(f'v_lshlrev_b32 v{d}, 1, v{d}')
    e(f'v_bfe_u32 v{a}, v{vL}, 2, 2')
    e(f'v_xor_b32 v{d}, v{d}, v{a}')
    e(f'v_lshlrev_b32 v{d}, 4, v{d}')
    e(f'v_and_b32 v{a}, 31, v{vL}')
    e(f'v_lshl_add_u32 v{a}, v{a}, 6, v{d}')
    e(f's_and_b32 s{sT0}, s{sW1K}, 0x1000')
    e(f's_add_u32 s{sT0}, s{sT0}, {L_TAB}')
    e(f'v_add_u32 v{a}, s{sT0}, v{a}')
    e(f'v_xor_b32 v{d}, 16, v{a}')
    fl_p1()
    g.stamp('tb')
    g.wait(lg='all')
    e('s_barrier')
    g.stamp(8)
    vKA, vD0, vD1 = 32, 64, 80
    for h in range(2):
        for t in range(2):
            g.ds(f'ds_read_b128 {vr(vKA + 8 * h + 4 * t, 4)}, v{d if t else a} offset:{2048 * h}', f'k{h}{t}')
    probe(0xcccc)
    for h in range(2):
        for t in range(2):
            g.wait(lg=f'k{h}{t}')
            mfma(vD0 + 16 * h, vKA + 8 * h + 4 * t, vP0 + 8 * h + 4 * t, '0' if t == 0 else vD0 + 16 * h)
    g.nop(8)
    for h in range(2):
        D = vD0 + 16 * h
        e(f'v_add_f32 v{ta + h}, v{D + 8}, v{D + 9}')
        for i in range(10, 16):
            e(f'v_add_f32 v{ta + h}, v{ta + h}, v{D + i}')
    g.nop(2)
    e(f'v_permlane32_swap_b32 v{ta}, v{tb_}')
    g.nop(1)
    e(f'v_add_f32 v{ta}, v{ta}, v{tb_}')
    e(f'v_add_f32 v{ta}, {hex(f2u(1e-6))}, v{ta}')
    e(f'v_rcp_f32 v{ta}, v{ta}')
    g.nop(1)
    e(f'v_mov_b32 v{tb_}, v{ta}')
    g.nop(2)
    e(f'v_permlane32_swap_b32 v{ta}, v{tb_}')
    g.nop(1)
    for h in range(2):
        D = vD0 + 16 * h
        for i in range(0, 8, 2):
            e(f'v_pk_mul_f32 {vr(D + i, 2)}, {vr(D + i, 2)}, {vr(ta, 2)} op_sel:[0,{h}] op_sel_hi:[1,{h}]')
        for i in range(4):
            e(f'v_cvt_pk_bf16_f32 v{vS + 4 * h + i}, v{D + 2 * i}, v{D + 2 * i + 1}')
    g.vmop(f'buffer_store_dwordx4 {vr(vS, 4)}, v{vL16}, {srd(SWS)}, s{sACT} offen sc1', 'ost')
    g.vmop(f'buffer_store_dwordx4 {vr(vS + 4, 4)}, v{vL16}, {srd(SWS)}, s{sACT} offen offset:1024 sc1', 'ost')
    qb = opt.get('qb', 10)
    g.stamp('os')
    check(0xcccc)
    g.stamp('oc')
    g.half('o', lambda: [dma_w2(st) for st in rest[:qb]])
    p2_bias()
    p1flag_off()
    g.stamp('od')
    g.half('o', lambda: g.wait(vm='ost'))
    g.half('y', lambda: g.wait(vm='ost'))
    g.stamp('ow')
    e('s_barrier')
    publish()
    g.stamp(9)
    g.half('o', lambda: [dma_w2(st) for st in rest[qb:]])
    g.half('y', lambda: [dma_w2(st) for st in rest[qa:]])
    for st in range(NL):
        hload(st)
    e('s_branch L_p2')

    g.lab('L_ffn')
    g.vm = list(vm_ffn)
    g.lg = []
    c('================ FFN workgroup')
    vA = 32
    vF = 80
    vB = 112
    vG = 128
    sLAST = 3
    mksrd(SSM, 16, 2752)
    colperm_addr(vCP)
    e(f's_lshr_b32 s{sT2}, s{sW}, 2')
    e(f's_mul_i32 s{sLAST}, s{sLAST}, s{sT2}')
    e(f's_lshl_b32 s{sT3}, s{sT2}, 6')
    e(f's_add_u32 s{sT3}, s{sT3}, s{sWO_}')
    for i in range(3):
        g.vmop(f'buffer_load_ushort v{vB + 4 * i}, v{vCP}, {srd(SSM)}, s{sT3} offen offset:{128 * i}', 'st0')
    e(f's_lshl_b32 s{sACT}, s{sT3}, 5')
    e(f's_lshl_b32 s{sT2}, s{sTG}, 2')
    e(f's_and_b32 s{sT3}, s{sW}, 3')
    e(f's_add_u32 s{sT2}, s{sT2}, s{sT3}')
    e(f's_mul_i32 s{sT2}, s{sT2}, {ACT_TB}')
    e(f's_add_u32 s{sACT}, s{sACT}, s{sT2}')
    e(f's_add_u32 s{sACT}, s{sACT}, {WS_ACT}')
    setup_common()
    for i in range(3):
        for k in range(1, 4):
            e(f'v_mov_b32 v{vB + 4 * i + k}, 0')
    for k in range(4):
        e(f'v_mov_b32 v{vB + 12 + k}, 0x3f803f80')
    nst(3)
    e('s_barrier')
    dma_x(1)
    f_stage_w(1)
    nst(4)
    g.stamp(1)
    g.wait(vm='st0')
    nst(5)
    g.wait(lg='all')
    for j in range(3):
        mfma(vA + 16 * j, vB + 4 * j, vB + 12, '0')
    e('s_barrier')
    g.stamp(2)

    def g_loads():
        def f():
            e(f's_lshl_b32 s{sD}, s{sGRP}, 14')
            e(f's_add_u32 s{sD}, s{sD}, s{sXO}')
            e(f's_add_u32 s{sD}, s{sD}, s{sW2K}')
            g.vmop(f'buffer_load_dwordx4 {vr(vG, 4)}, v{vL16}, {srd(SX)}, s{sD} offen', 'g')
        g.atomic(f)
        g.vmop(f'buffer_load_dwordx4 {vr(vG + 4, 4)}, v{vL16}, {srd(SX)}, s{sD} offen offset:1024', 'g')
        g.vmop(f'global_load_dwordx4 {vr(vG + 8, 4)}, v{vL16}, s[22:23]', 'g')

    def g_compute():
        a, b, acc = ta, tb_, td
        make_tag()
        g.wait(vm='g')
        for i in range(4):
            for hi in range(2):
                op = (lambda d_, s_: f'v_and_b32 v{d_}, 0xffff0000, v{s_}') if hi else (lambda d_, s_: f'v_lshlrev_b32 v{d_}, 16, v{s_}')
                e(op(b, vG + 8 + i))
                for t in range(2):
                    e(op(a, vG + 4 * t + i))
                    e(f'v_mul_f32 v{acc + t}, v{a}, v{b}' if i == 0 and hi == 0 else f'v_fmac_f32 v{acc + t}, v{a}, v{b}')
        g.nop(2)
        e(f'v_permlane32_swap_b32 v{acc}, v{acc + 1}')
        g.nop(1)
        e(f'v_add_f32 v{acc}, v{acc}, v{acc + 1}')
        for r in (1, 2, 4, 8):
            g.nop(2)
            e(f'v_add_f32_dpp v{acc}, v{acc}, v{acc} row_ror:{r} row_mask:0xf bank_mask:0xf')
        e(f'v_mov_b32 v{a}, v{acc}')
        g.nop(2)
        e(f'v_permlane16_swap_b32 v{a}, v{acc}')
        g.nop(1)
        e(f'v_add_f32 v{acc}, v{acc}, v{a}')
        e(f'v_mul_f32 v{acc}, {hex(LOG2E | 0x80000000)}, v{acc}')
        e(f'v_exp_f32 v{acc}, v{acc}')
        g.nop(1)
        e(f'v_add_f32 v{acc}, 1.0, v{acc}')
        e(f'v_rcp_f32 v{acc}, v{acc}')
        e(f'v_lshrrev_b32 v{a}, 3, v{vL}')
        e(f's_lshl_b32 s{sT0}, s{sTG}, 9')
        e(f's_lshl_b32 s{sT1}, s{sGRP}, 6')
        e(f's_add_u32 s{sT0}, s{sT0}, s{sT1}')
        e(f's_lshl_b32 s{sT1}, s{sW}, 3')
        e(f's_add_u32 s{sT0}, s{sT0}, s{sT1}')
        e(f's_add_u32 s{sT0}, s{sT0}, {WS_G}')

        def st():
            e('s_mov_b32 exec_lo, 1')
            e('s_mov_b32 exec_hi, 1')
            g.vmop(f'buffer_store_dword v{acc}, v{a}, {srd(SWS)}, s{sT0} offen sc1', 'ost')
            e('s_mov_b64 exec, -1')
        g.atomic(st)
        K0 = -2.0 * 0.7978845608028654 * 1.4426950408889634
        e(f's_mov_b32 s{sK1}, {hex(f2u(K0 * 0.044715))}')
        e(f'v_mov_b32 v{vM}, {hex(f2u(K0))}')
        fl_p1()

    dmaq = {s: g.capture(lambda: (dma_x(s + 2), f_stage_w(s + 2))) for s in range(6)}
    dmaq[2] = g.capture(g_loads) + dmaq[2]
    fa, fb = opt.get('fa', 3), opt.get('fb', 5)
    dmaq[6] = w2q(range(fa))
    dmaq[7] = w2q(range(fa, fb))

    FB = [80, 96, 144]

    def f_mm(n, j):
        buf = FB[n % 3]
        mfma(vA + 16 * j, buf + 4 + 4 * j, buf, vA + 16 * j)

    mainloop(3, lambda n: FB[n % 3], lambda n, j: FB[n % 3] + 4 + 4 * j, lambda s: FW[s % 3], f_mm, dmaq,
             spread(g.capture(g_compute), 16, 28))
    g.stamp(3)
    p2_bases()
    g.nop(2)
    vE = 80

    def gelu(j):
        A = vA + 16 * j
        P = lambda r: vr(r, 2)
        for i in range(0, 16, 2):
            e(f'v_pk_mul_f32 {P(vE + i)}, {P(A + i)}, {P(A + i)}')
        for i in range(0, 16, 2):
            e(f'v_pk_fma_f32 {P(vE + i)}, {P(vE + i)}, s[{sK1 - 1}:{sK1}], {P(vM - 1)} op_sel:[0,1,1] op_sel_hi:[1,1,1]')
        for i in range(0, 16, 2):
            e(f'v_pk_mul_f32 {P(vE + i)}, {P(vE + i)}, {P(A + i)}')
        for i in range(16):
            e(f'v_exp_f32 v{vE + i}, v{vE + i}')
        for i in range(0, 16, 2):
            e(f'v_pk_add_f32 {P(vE + i)}, {P(vE + i)}, 1.0 op_sel_hi:[1,0]')
        for i in range(16):
            e(f'v_rcp_f32 v{vE + i}, v{vE + i}')
        for i in range(0, 16, 2):
            e(f'v_pk_mul_f32 {P(vE + i)}, {P(vE + i)}, {P(A + i)}')
        pack16(A, vE)

    HF = ['sc1', '', 'sc1 nt', 'sc0 sc1'][opt.get('hf', 0)]

    def hstore(j):
        A = vA + 16 * j
        e(f's_add_u32 s{sT0}, s{sACT}, {4096 * j}')
        if j == 2:
            e(f's_add_u32 s{sT0}, s{sT0}, s{sLAST}')
        g.vmop(f'buffer_store_dwordx4 {vr(A, 4)}, v{vL16}, {srd(SWS)}, s{sT0} offen {HF}', 'ost')
        g.vmop(f'buffer_store_dwordx4 {vr(A + 4, 4)}, v{vL16}, {srd(SWS)}, s{sT0} offen offset:1024 {HF}', 'ost')

    fc = opt.get('fc', 14)

    def fdma():
        for st in range(fb, fc):
            dma_w2(st)
    g.half('y', fdma)
    g.stamp('fy')
    for j in range(3):
        gelu(j)
        g.stamp(f'g{j}')
        hstore(j)
        g.stamp(f's{j}')
    g.stamp(4)
    g.half('o', fdma)
    g.stamp('fo')
    p1flag_off()
    g.half('o', lambda: g.wait(vm=['ost', 'w2_10']))
    g.half('y', lambda: g.wait(vm=['ost', 'w2_10']))
    g.stamp('fw')
    e('s_barrier')
    publish()
    g.stamp(5)
    g.weave(g.capture(w2_move), w2q(range(fc, 19)))
    g.wait(lg='all')
    e('s_barrier')
    g.play(w2q(range(19, 30)))
    g.stamp(6)
    p2_bias()
    probe(0xcccc)
    check(0xcccc)
    g.stamp(9)
    for st in range(NL):
        hload(st)

    g.lab('L_p2')
    g.vm = [(f'h{st}', False) for st in range(NL)]
    g.lg = []
    c('================ phase 2')
    g.stamp(10)
    vGV = vM
    nxt = NL
    OP = opt.get('opoll', 18)
    for st in range(30):
        if st == OP - 2:
            lE = g.newlab('ep')
            e(f's_lshl_b32 s{sK1}, s2, 3')
            e(f's_add_u32 s{sK1}, s{sK1}, s{sW}')
            e(f's_cmp_lg_u32 s{sK1}, 2047')
            e(f's_cbranch_scc1 {lE}')
            vm_save = list(g.vm)
            e(f'v_lshrrev_b32 v{ta}, 1, v{vL}')
            e(f'v_and_b32 v{tb_}, 1, v{vL}')
            e(f'v_lshl_add_u32 v{ta}, v{ta}, 2, v{tb_}')
            e(f'v_lshlrev_b32 v{vFO}, 7, v{ta}')
            for k in range(2):
                e(f's_mov_b32 s{sFL}, {WS_FP1 + 256 + k * 16384}')
                probe(-1)
                check(-1)
            e(f'v_lshlrev_b32 v{vFO}, 7, v{vL}')
            fl_p1()
            g.vm = vm_save
            g.lab(lE)
            probe(0x3333)
        if st == OP:
            g.stamp(11)
            check(0x3333)
            g.stamp(12)
            lE = g.newlab('ep')
            e(f's_cmp_lg_u32 s{sK1}, 2047')
            e(f's_cbranch_scc1 {lE}')
            e(f'v_mov_b32 v{vPR}, s{sTAG}')
            e('s_mov_b64 exec, 1')
            g.vmop(f'buffer_store_dword v{vPR}, v{vL16}, {srd(SWS)}, 0 offen sc1', 'ep', cond=True)
            e('s_mov_b64 exec, -1')
            g.lab(lE)
            for k in range(22, 30):
                hload(k)
            e(f's_lshl_b32 s{sT0}, s{sTT}, 1')
            e(f's_lshr_b32 s{sT1}, s{sW}, 2')
            e(f's_add_u32 s{sT0}, s{sT0}, s{sT1}')
            e(f's_lshl_b32 s{sT0}, s{sT0}, 7')
            e(f's_add_u32 s{sT0}, s{sT0}, {WS_G}')
            e(f'v_and_b32 v{ta}, 31, v{vL}')
            e(f'v_lshlrev_b32 v{ta}, 2, v{ta}')
            g.vmop(f'buffer_load_dword v{vGV}, v{ta}, {srd(SWS)}, s{sT0} offen sc1', 'gv')
        if 11 <= st + 1 < 30:
            p2_wread(vWL + 8 * ((st + 1) & 1), st + 1)
        g.wait(vm=f'h{st}', lg=f'w{st}')
        if st == 0:
            for nb in range(2):
                mfma(vAB + 16 * nb, vB2 + 4 * nb, vB2 + 8, '0')
        w = vWR + 8 * st if st < 11 else vWL + 8 * (st & 1)
        acc = vAB if st < 22 else vAA
        for nb in range(2):
            mfma(acc + 16 * nb, w + 4 * nb, hreg(st), '0' if st == 22 else acc + 16 * nb)
        if st == 8:
            e('s_barrier')
        if st == 20:
            e('s_barrier')
        if nxt < 22:
            hload(nxt)
            nxt += 1
    g.stamp(13)
    a, b, d = ta, tb_, td
    e(f'v_and_b32 v{a}, 31, v{vL}')
    e(f'v_and_b32 v{b}, 15, v{vL}')
    e(f'v_lshrrev_b32 v{d}, 5, v{vL}')
    e(f'v_xor_b32 v{b}, v{b}, v{d}')
    e(f'v_lshlrev_b32 v{b}, 4, v{b}')
    e(f'v_lshl_add_u32 v{a}, v{a}, 8, v{b}')
    e(f's_and_b32 s{sT0}, s{sW}, 3')
    e(f's_lshl_b32 s{sT0}, s{sT0}, 14')
    e(f's_lshr_b32 s{sT1}, s{sW}, 2')
    e(f's_lshl_b32 s{sT1}, s{sT1}, 13')
    e(f's_add_u32 s{sT0}, s{sT0}, s{sT1}')
    e(f's_add_u32 s{sT0}, s{sT0}, {11 * SLOT}')
    e(f'v_add_u32 v{a}, s{sT0}, v{a}')
    g.wait(vm='gv')
    for q in range(8):
        e(f'v_xor_b32 v{b}, {32 * q}, v{a}')
        for i in range(4 * q, 4 * q + 4):
            e(f'v_sub_f32 v{vAA + i}, v{vAA + i}, v{vAB + i}')
        for i in range(4 * q, 4 * q + 4):
            e(f'v_fmac_f32 v{vAB + i}, v{vGV}, v{vAA + i}')
        e(f'ds_write_b128 v{b}, {vr(vAB + 4 * q, 4)}')
    e(f'v_lshrrev_b32 v{a}, 3, v0')
    e(f'v_and_b32 v{vM}, 7, v0')
    e(f'v_lshlrev_b32 v{d}, 4, v{vM}')
    e(f'v_lshl_add_u32 v{vHA}, v{a}, 10, v{d}')
    e(f'v_lshlrev_b32 v{vM}, 1, v{vM}')
    e(f'v_and_b32 v{d}, 15, v{a}')
    e(f'v_xor_b32 v{vM}, v{vM}, v{d}')
    e(f'v_lshlrev_b32 v{vM}, 4, v{vM}')
    e(f'v_lshl_add_u32 v{a}, v{a}, 8, v{vM}')
    e(f'v_add_u32 v{a}, {11 * SLOT}, v{a}')
    e(f'v_xor_b32 v{d}, 16, v{a}')
    e(f's_lshl_b32 s{sT0}, s{sTT}, 16')
    e(f's_add_u32 s{sT0}, s{sT0}, s{sW2O}')
    e('s_waitcnt lgkmcnt(0)')
    e('s_barrier')
    R = 32
    for k in range(4):
        e(f'ds_read_b128 {vr(R + 8 * k, 4)}, v{a} offset:{k * 16384}')
        e(f'ds_read_b128 {vr(R + 8 * k + 4, 4)}, v{d} offset:{k * 16384}')
    e('s_waitcnt lgkmcnt(4)')
    for i in range(8):
        e(f'v_add_f32 v{R + i}, v{R + i}, v{R + 8 + i}')
    e('s_waitcnt lgkmcnt(0)')
    for i in range(8):
        e(f'v_add_f32 v{R + 16 + i}, v{R + 16 + i}, v{R + 24 + i}')
    for i in range(8):
        e(f'v_add_f32 v{R + i}, v{R + i}, v{R + 16 + i}')
    for i in range(4):
        e(f'v_cvt_pk_bf16_f32 v{R + 8 + i}, v{R + 2 * i}, v{R + 2 * i + 1}')
    e(f'buffer_store_dwordx4 {vr(R + 8, 4)}, v{vHA}, {srd(SOUT)}, s{sT0} offen')
    if opt.get('stamps'):
        e('s_waitcnt vmcnt(0)')
        g.stamp(14)
        e('s_memrealtime s[98:99]')
        e('s_waitcnt lgkmcnt(0)')
        e('s_mov_b32 s97, s98')
        e(f's_lshl_b32 s{sT0}, s2, 3')
        e(f's_add_u32 s{sT0}, s{sT0}, s{sW}')
        e(f's_lshl_b32 s{sT0}, s{sT0}, 7')
        e(f's_add_u32 s{sT0}, s{sT0}, {WS_STAMP}')
        e('s_mov_b64 exec, 1')
        for i in range(18):
            e(f'v_mov_b32 v{ta}, s{80 + i}')
            e(f'buffer_store_dword v{ta}, v{vL16}, {srd(SWS)}, s{sT0} offen offset:{4 * i}')
    g.lab('L_end')
    e('s_endpgm')
    return g.L


HEAD = open('cdna_kernels/' + NAME + '.s.ref').read().split('; Override')[0]


def spinner(opt):
    if opt.get('list') != 4:
        return ''
    A, B, C, sh = opt.get('sa', 17), opt.get('sb', 16), opt.get('sc', -1), opt.get('sh', 0)
    L = ['s_cmp_lg_u32 s2, 0', 's_cbranch_scc1 L_spe', 's_load_dwordx2 s[4:5], s[0:1], 96', 'v_lshlrev_b32 v1, 10, v0',
         f'v_add_u32 v1, {WS_STAMP}, v1', 'v_mov_b32 v4, 0', 'v_mov_b32 v5, -1', 's_waitcnt lgkmcnt(0)']
    for k in range(4):
        L += [f'global_load_dword v2, v1, s[4:5] offset:{4 * A}', f'global_load_dword v3, v1, s[4:5] offset:{4 * max(B, 0)}',
              f'global_load_dword v6, v1, s[4:5] offset:{4 * max(C, 0)}', 'v_add_u32 v1, 0x10000, v1', 's_waitcnt vmcnt(0)']
        if C >= 0:
            L += ['v_sub_u32 v2, v2, v6']
        if not (opt.get('half') == 1 and k >= 2) and not (opt.get('half') == 2 and k < 2):
            L += ['v_max_u32 v4, v4, v2', 'v_min_u32 v5, v5, v3']
    L += ['s_mov_b32 s6, 0', 's_mov_b32 s7, -1', 's_nop 4']
    for i in range(64):
        L += [f'v_readlane_b32 s8, v4, {i}', f'v_readlane_b32 s9, v5, {i}', 's_nop 1', 's_max_u32 s6, s6, s8', 's_min_u32 s7, s7, s9']
    if B >= 0:
        L += ['s_sub_u32 s6, s6, s7']
    L += [f's_lshr_b32 s6, s6, {sh}', f's_mul_i32 s6, s6, {opt.get("mul", 1)}', 's_min_u32 s6, s6, 20000', 's_memrealtime s[8:9]', 's_waitcnt lgkmcnt(0)', 'L_spl:',
          's_memrealtime s[10:11]', 's_waitcnt lgkmcnt(0)', 's_sub_u32 s10, s10, s8', 's_cmp_lt_u32 s10, s6', 's_cbranch_scc1 L_spl', 'L_spe:']
    return ''.join('  ' + x + '\n' for x in L)


def emit(opt):
    body = build(opt)
    s = HEAD
    main = f'; @launch kernel={NAME}_kernel grid=(256,1,1) block=(512,1,1) lds={LDS_BYTES}\n'
    emp = '; @launch kernel=empty_kernel grid=(256,1,1) block=(64,1,1) lds=0\n'
    if opt.get('list') == 1:
        s += main + emp
    elif opt.get('list') == 2:
        s += emp + main
    elif opt.get('list') == 3:
        s += main + main
    elif opt.get('list') == 4:
        s += main + '; @launch kernel=empty_kernel grid=(1,1,1) block=(64,1,1) lds=0\n'
    else:
        s += f'; @launch grid=(256,1,1) block=(512,1,1) lds={LDS_BYTES}\n'
    s += '.amdgcn_target "amdgcn-amd-amdhsa--gfx950"\n.text\n'
    s += f'.globl {NAME}_kernel\n.p2align 8\n.type {NAME}_kernel,@function\n{NAME}_kernel:\n'
    s += '\n'.join(body) + '\n'
    s += '; padding so that the code prefetch stays inside the section\n.fill 8192, 4, 0xbf800000\n'
    s += f'''.section .rodata,"a"
.p2align 6
.amdhsa_kernel {NAME}_kernel
  .amdhsa_next_free_vgpr 256
  .amdhsa_next_free_sgpr 102
  .amdhsa_accum_offset 256
  .amdhsa_group_segment_fixed_size 0
  .amdhsa_kernarg_size 104
  .amdhsa_user_sgpr_count 2
  .amdhsa_user_sgpr_kernarg_segment_ptr 1
  .amdhsa_system_sgpr_workgroup_id_x 1
.end_amdhsa_kernel
'''
    if opt.get('list') in (1, 2, 4):
        s += '''.text
.globl empty_kernel
.p2align 8
.type empty_kernel,@function
empty_kernel:
''' + spinner(opt) + '''  s_endpgm
.section .rodata,"a"
.p2align 6
.amdhsa_kernel empty_kernel
  .amdhsa_next_free_vgpr 8
  .amdhsa_next_free_sgpr 16
  .amdhsa_accum_offset 8
  .amdhsa_group_segment_fixed_size 0
  .amdhsa_kernarg_size 104
  .amdhsa_user_sgpr_count 2
  .amdhsa_user_sgpr_kernarg_segment_ptr 1
  .amdhsa_system_sgpr_workgroup_id_x 1
.end_amdhsa_kernel
'''
    return s


if __name__ == '__main__':
    out = sys.argv[1]
    opt = {}
    for a in sys.argv[2:]:
        k, v = a.split('=')
        opt[k] = v if k == 'sn' else int(v)
    open(out, 'w').write(emit(opt))
```

```python
import sys

NAME = 'gated_mix__linear_kernel_hedgehog__dense_activation_gelu__prompt'

WS_E = 0
WS_FP1 = 0x1000
WS_FKV = 0x10000
WS_G = 0x20000
WS_KVP = 0x40000
KVP_SZ = 4352
WS_ACT = 0x100000
ACT_TB = 120 * 1024
WS_STAMP = 0x1000000
WS_SIZE = 0x2000000
OOB = 0x70000000

SLOT = 8192
MISC = 19 * SLOT
L_WPHI = MISC
L_ZS = MISC + 2048
L_TAB = MISC
LDS_BYTES = 163840

LOG2E = 0x3fb8aa3b


def f2u(x):
    import struct
    return struct.unpack('<I', struct.pack('<f', x))[0]


class Gen:
    def __init__(self, opt):
        self.o = opt
        self.L = []
        self.vm = []
        self.lg = []
        self.nlab = 0
        self.cap = None
        self.who = False

    def e(self, s):
        if self.cap is not None:
            self.cap.append([('e', s)])
        else:
            self.L.append('  ' + s)

    def c(self, s):
        self.L.append('  ; ' + s)

    def lab(self, s):
        assert self.cap is None
        self.L.append(s + ':')

    def newlab(self, p):
        self.nlab += 1
        return f'L_{p}{self.nlab}'

    def vmop(self, s, tag, cond=False):
        if self.cap is not None:
            self.cap.append([('vm', s, tag, cond)])
        else:
            self.L.append('  ' + s)
            self.vm.append((tag, cond if cond else self.who))

    def ds(self, s, tag):
        if self.cap is not None:
            self.cap.append([('ds', s, tag)])
        else:
            self.L.append('  ' + s)
            self.lg.append(tag)

    def wait(self, vm=None, lg=None):
        if self.cap is not None:
            self.cap.append([('wait', vm, lg)])
            return
        parts = []
        halves = self.who if self.who else 'oy'
        n = None
        if vm == 'all':
            n = 0
        elif vm is not None:
            tags = [vm] if isinstance(vm, str) else vm
            ns = []
            for half in halves:
                seq = [(t, cnd) for (t, cnd) in self.vm if cnd in (False, True, half)]
                last = max([i for i, (t, cnd) in enumerate(seq) if t in tags], default=-1)
                if last >= 0:
                    ns.append(sum(1 for (t, cnd) in seq[last + 1:] if cnd is not True))
            if ns:
                n = min(ns)
        if n is not None:
            assert n <= 63
            parts.append(f'vmcnt({n})')
            keep = set()
            for half in halves:
                k = 0
                for i in range(len(self.vm) - 1, -1, -1):
                    cnd = self.vm[i][1]
                    if cnd in (False, True, half):
                        if k >= n:
                            break
                        keep.add(i)
                        if cnd is not True:
                            k += 1
            if self.who:
                other = 'y' if self.who == 'o' else 'o'
                self.vm = [x if i in keep or x[1] in (True, other) else (x[0], other)
                           for i, x in enumerate(self.vm) if i in keep or x[1] != self.who]
            else:
                self.vm = [x for i, x in enumerate(self.vm) if i in keep]
        if lg == 'all':
            parts.append('lgkmcnt(0)')
            self.lg = []
        elif lg is not None:
            tags = [lg] if isinstance(lg, str) else lg
            last = max([i for i, t in enumerate(self.lg) if t in tags], default=-1)
            if last >= 0:
                n = min(len(self.lg) - last - 1, 15)
                parts.append(f'lgkmcnt({n})')
                self.lg = self.lg[len(self.lg) - n:] if n else []
        if parts:
            self.L.append('  s_waitcnt ' + ' '.join(parts))

    def capture(self, fn, atomic=False):
        old, self.cap = self.cap, []
        fn()
        q, self.cap = self.cap, old
        if atomic:
            q = [[x for grp in q for x in grp]]
        return q

    def atomic(self, fn):
        if self.cap is None:
            fn()
        else:
            self.cap += self.capture(fn, atomic=True)

    def play(self, q, k=None):
        k = len(q) if k is None else min(k, len(q))
        for _ in range(k):
            for x in q.pop(0):
                if x[0] == 'e':
                    self.e(x[1])
                elif x[0] == 'vm':
                    self.vmop(x[1], x[2], x[3])
                elif x[0] == 'ds':
                    self.ds(x[1], x[2])
                else:
                    self.wait(x[1], x[2])

    def weave(self, main, *fills):
        n = len(main)
        tot = [len(f) for f in fills]
        for i in range(n):
            self.play(main, 1)
            for f, t in zip(fills, tot):
                self.play(f, (i + 1) * t // n - i * t // n)

    def half(self, who, fn):
        l = self.newlab('half')
        self.e('s_cmp_gt_u32 s60, 3')
        self.e(f's_cbranch_scc{1 if who == "o" else 0} {l}')
        self.who = who
        fn()
        self.who = False
        self.lab(l)

    def nop(self, n):
        while n > 0:
            k = min(n, 16)
            self.e(f's_nop {k - 1}')
            n -= k

    def stamp(self, i):
        if not self.o.get('stamps') or (self.o.get('stamps') == 2 and i != 14):
            return
        names = self.o.get('sn')
        if names and i != 14:
            names = names.split(',')
            if str(i) not in names:
                return
            i = names.index(str(i)) + 1
        elif not isinstance(i, int):
            return
        self.e('s_memtime s[98:99]')
        self.wait(lg='all')
        self.e(f's_mov_b32 s{80 + i}, s98')


def vr(a, n=1):
    return f'v{a}' if n == 1 else f'v[{a}:{a + n - 1}]'


SX, SW1, SW2, SWO, SWS, SOUT, SSM = 32, 36, 40, 44, 48, 52, 56
sW, sTG, sGRP, sCGI, sTT, sD, sW1K, sW2K = 60, 61, 62, 63, 64, 65, 66, 67
sTAG = 68
sXO = 70
sWO_ = 71
sT0, sT1, sT2, sT3 = 72, 73, 74, 75
sVAL = 76
sC = 78
sCNT = 79
sW2O = 30
sACT = 31
sFL = 12
sK1 = 13
sRO = 26
sKS = 27
sR2, sR3 = 4, 5
XS = {2: 7, 0: 9, 1: 11}
XBASE = 7 * SLOT


def srd(r):
    return f's[{r}:{r + 3}]'


def build(opt):
    g = Gen(opt)
    e, c = g.e, g.c

    vL = 1
    vXA0, vXA1, vWA, vWA2, vW2A = 2, 3, 4, 5, 6
    vL16 = 7
    vXR = 8
    vT = 12
    vHA = 18
    vM = 19
    vTmp = 28
    vPR = 26
    vFO = 8
    vU = 9
    vWR = 128
    ta, tb_, td = vTmp, vTmp + 1, vTmp + 2

    def mksrd(r, lo, size):
        e(f's_mov_b32 s{r}, s{lo}')
        e(f's_mov_b32 s{r + 1}, s{lo + 1}')
        e(f's_mov_b32 s{r + 2}, {size}')
        e(f's_mov_b32 s{r + 3}, 0x20000')

    def kstage(stage):
        e(f's_add_u32 s{sKS}, s{sRO}, {stage}')
        e(f's_and_b32 s{sKS}, s{sKS}, 7')

    def dma_x(stage):
        def first():
            kstage(stage)
            e(f's_add_u32 m0, s{sW2K}, {XS[stage % 3] * SLOT}')
            e(f's_lshl_b32 s{sD}, s{sKS}, 7')
            e(f's_add_u32 s{sD}, s{sD}, s{sXO}')
            g.vmop(f'buffer_load_dwordx4 v{vXA0}, {srd(SX)}, s{sD} offen lds', f'st{stage}')
        g.atomic(first)
        g.vmop(f'buffer_load_dwordx4 v{vXA1}, {srd(SX)}, s{sD} offen offset:1024 lds', f'st{stage}')

    def dma_w1(tag, stage, pitch, step, slot, va, own=False):
        def f():
            if own:
                kstage(stage)
            e(f's_add_u32 m0, s{sW1K}, {slot * SLOT}')
            if step is None:
                e(f's_mul_i32 s{sD}, s{sKS}, {64 * pitch}')
                e(f's_add_u32 s{sD}, s{sD}, s{sWO_}')
            else:
                e(f's_add_u32 s{sD}, s{sD}, {step}')
            g.vmop(f'buffer_load_dwordx4 v{va}, {srd(SW1)}, s{sD} offen lds', tag)
        g.atomic(f)

    def w2slot(st):
        return st if st < 19 else st - 19

    def p2stage(st, sh):
        if st < 21:
            e(f's_cmp_ge_u32 s{sR2}, {21 - st}')
            e(f's_cselect_b32 s{sD}, {st - 21}, {st}')
            e(f's_add_u32 s{sD}, s{sD}, s{sR2}')
            e(f's_lshl_b32 s{sD}, s{sD}, {sh}')
        elif st == 21:
            e(f's_mov_b32 s{sD}, {21 << sh}')
        else:
            e(f's_add_u32 s{sD}, s{sR3}, {st - 22}')
            e(f's_and_b32 s{sD}, s{sD}, 7')
            e(f's_lshl_b32 s{sD}, s{sD}, {sh}')

    def dma_w2(st):
        def f():
            e(f's_add_u32 m0, s{sW1K}, {w2slot(st) * SLOT}')
            p2stage(st, 16)
            e(f's_add_u32 s{sD}, s{sD}, s{sW2O}')
            g.vmop(f'buffer_load_dwordx4 v{vW2A}, {srd(SW2 if st < 22 else SWO)}, s{sD} offen lds', f'w2_{st}')
        g.atomic(f)

    def w2touch(ffn):
        def f():
            e(f's_lshr_b32 s{sD}, s2, 3')
            e(f's_and_b32 s{sD}, s{sD}, 15')
            e(f's_lshl_b32 s{sD}, s{sD}, 13')
            e(f's_lshl_b32 s{sKS}, s{sW}, 17')
            e(f's_add_u32 s{sD}, s{sD}, s{sKS}')
            e(f'v_lshlrev_b32 v{vPR}, 3, v{vL16}')
            if ffn:
                e(f's_add_u32 s{sKS}, s{sD}, {1024 * 1024}')
                g.vmop(f'buffer_load_dword v{vPR + 1}, v{vPR}, {srd(SW2)}, s{sKS} offen', 'touch')
                e(f's_sub_u32 s{sD}, s{sD}, {44 * 8192}')
                g.vmop(f'buffer_load_dword v{vPR + 1}, v{vPR}, {srd(SWO)}, s{sD} offen', 'touch')
            else:
                g.vmop(f'buffer_load_dword v{vPR + 1}, v{vPR}, {srd(SW2)}, s{sD} offen', 'touch')
        return g.capture(f, atomic=True) if opt.get('wt', 0) else []

    def w2q(sts):
        return g.capture(lambda: [dma_w2(st) for st in sts])

    e('s_cmp_ge_u32 s2, 256')
    e('s_cbranch_scc1 L_end')
    e('s_load_dwordx16 s[4:19], s[0:1], 0')
    e('s_load_dwordx8 s[20:27], s[0:1], 64')
    e('s_load_dwordx2 s[28:29], s[0:1], 96')
    if opt.get('stamps'):
        e('s_memrealtime s[96:97]')
        e('s_memtime s[98:99]')
    e(f'v_lshrrev_b32 v{ta}, 6, v0')
    e(f's_lshr_b32 s{sT1}, s2, 3')
    if opt.get('ctouch', 1):
        e(f's_getpc_b64 s[{sT2}:{sT3}]')
        e(f's_lshl_b32 s{sT0}, s{sT1}, 10')
        e(f'v_lshl_add_u32 v{tb_}, v{ta}, 7, s{sT0}')
        g.vmop(f'global_load_dword v{vTmp + 3}, v{tb_}, s[{sT2}:{sT3}]', 'touch')
    e(f'v_and_b32 v{vL}, 63, v0')
    e(f'v_readfirstlane_b32 s{sW}, v{ta}')
    TM = opt.get('touch', 3)
    sPA, sPB = SOUT, SOUT + 2
    sOA, sOB = SWO, SWO + 1
    if TM & 1:
        slots = [0, 1, 5, 7, 3, 10, 1, 5, 0, 7, 3, 12, 12, 12, 12, 12]
        tab = sum(v << (4 * i) for i, v in enumerate(slots))
        e(f's_add_u32 s{sT0}, s{sW}, s{sT1}')
        e(f's_and_b32 s{sT0}, s{sT0}, 15')
        e(f's_max_u32 s{sOA}, s{sT0}, 11')
        e(f's_sub_u32 s{sOA}, s{sOA}, 11')
        e(f's_lshl_b32 s{sOA}, s{sOA}, 21')
        e(f's_lshl_b32 s{sT0}, s{sT0}, 2')
        e(f's_mov_b32 s{sT2}, {hex(tab & 0xffffffff)}')
        e(f's_mov_b32 s{sT3}, {hex(tab >> 32)}')
        e(f's_lshr_b64 s[{sT2}:{sT3}], s[{sT2}:{sT3}], s{sT0}')
        e(f's_and_b32 s{sT2}, s{sT2}, 15')
        e(f's_lshl_b32 s{sT2}, s{sT2}, 3')
        e(f's_load_dwordx2 s[{sPA}:{sPA + 1}], s[0:1], s{sT2}')
    if TM & 2:
        e(f's_lshl_b32 s{sT0}, s{sW}, 2')
        e(f's_lshr_b32 s{sT2}, 0x69862222, s{sT0}')
        e(f's_and_b32 s{sT2}, s{sT2}, 15')
        e(f's_lshl_b32 s{sT3}, s{sT2}, 3')
        e(f's_load_dwordx2 s[{sPB}:{sPB + 1}], s[0:1], s{sT3}')
        e(f's_and_b32 s{sT0}, s{sW}, 1')
        e(f's_lshl_b32 s{sT0}, s{sT0}, 5')
        e(f's_add_u32 s{sT0}, s{sT0}, s{sT1}')
        e(f's_min_u32 s{sT0}, s{sT0}, 42')
        e(f's_and_b32 s{sOB}, s{sT1}, 15')
        e(f's_cmp_eq_u32 s{sT2}, 6')
        e(f's_cselect_b32 s{sOB}, s{sT0}, s{sOB}')
        e(f's_lshl_b32 s{sT0}, s{sT1}, 2')
        e(f's_add_u32 s{sT0}, s{sT0}, s{sW}')
        e(f's_and_b32 s{sT0}, s{sT0}, 63')
        e(f's_and_b32 s{sT3}, s2, 6')
        e(f's_lshl_b32 s{sT3}, s{sT3}, 5')
        e(f's_add_u32 s{sT0}, s{sT0}, s{sT3}')
        e(f's_cmp_eq_u32 s{sT2}, 2')
        e(f's_cselect_b32 s{sOB}, s{sT0}, s{sOB}')
        e(f's_lshl_b32 s{sOB}, s{sOB}, 6')
    e(f's_and_b32 s{sT0}, s2, 7')
    e(f's_and_b32 s{sTG}, s{sT0}, 1')
    e(f's_lshl_b32 s{sTG}, s{sTG}, 3')
    e(f's_and_b32 s{sT2}, s{sT1}, 7')
    e(f's_add_u32 s{sTG}, s{sTG}, s{sT2}')
    e(f's_lshr_b32 s{sT3}, s{sT1}, 3')
    e(f's_and_b32 s{sGRP}, s{sT0}, 6')
    e(f's_lshl_b32 s{sCGI}, s{sGRP}, 1')
    e(f's_add_u32 s{sCGI}, s{sCGI}, s{sT3}')
    e(f's_and_b32 s{sT3}, s{sT3}, 1')
    e(f's_add_u32 s{sGRP}, s{sGRP}, s{sT3}')
    e(f's_lshl_b32 s{sW1K}, s{sW}, 10')
    e(f's_lshl_b32 s{sW2K}, s{sW}, 11')
    e(f's_lshl_b32 s{sXO}, s{sTG}, 17')
    e(f's_and_b32 s{sCNT}, s{sT1}, 6')
    e(f's_add_u32 s{sT2}, s{sT0}, 1')
    e(f's_lshr_b32 s{sT2}, s{sT2}, 1')
    e(f's_add_u32 s{sCNT}, s{sCNT}, s{sT2}')
    e(f's_lshr_b32 s{sT2}, s{sT1}, 4')
    e(f's_lshl_b32 s{sT2}, s{sT2}, 2')
    e(f's_add_u32 s{sCNT}, s{sCNT}, s{sT2}')
    e(f'v_lshrrev_b32 v{ta}, 3, v{vL}')
    e(f'v_lshrrev_b32 v{tb_}, 4, v{vL}')
    e(f'v_and_b32 v{vWA2}, 7, v{vL}')
    e(f'v_xor_b32 v{vXA0}, v{vWA2}, v{tb_}')
    e(f'v_lshlrev_b32 v{vXA0}, 4, v{vXA0}')
    e(f'v_lshl_add_u32 v{vXA0}, v{ta}, 10, v{vXA0}')
    e(f's_lshl_b32 s{sT2}, s{sW}, 14')
    e(f'v_add_u32 v{vXA0}, s{sT2}, v{vXA0}')
    e(f'v_xor_b32 v{vXA1}, 64, v{vXA0}')
    e(f'v_add_u32 v{vXA1}, {8192 - 1024}, v{vXA1}')
    e(f'v_and_b32 v{tb_}, 1, v{tb_}')
    e(f'v_lshlrev_b32 v{tb_}, 2, v{tb_}')
    e(f'v_xor_b32 v{vWA2}, v{vWA2}, v{tb_}')
    e(f'v_lshlrev_b32 v{vWA2}, 4, v{vWA2}')
    e(f'v_lshrrev_b32 v{ta}, 3, v0')
    e(f'v_lshl_add_u32 v{vW2A}, v{ta}, 10, v{vWA2}')
    e(f'v_lshlrev_b32 v{vL16}, 4, v{vL}')
    e(f's_mov_b32 s{SX + 2}, {2048 * 1024}')
    e(f's_mov_b32 s{SX + 3}, 0x20000')
    e(f's_mov_b32 s{SW1 + 3}, 0x20000')
    e('s_waitcnt lgkmcnt(0)')
    if opt.get('stamps'):
        e('s_mov_b32 s80, s98')
    def nst(k):
        if opt.get('pst'):
            e(f's_memtime s[{82 + 2 * k}:{83 + 2 * k}]')
    nst(0)
    if TM & 1:
        e(f's_load_dword s100, s[{sPA}:{sPA + 1}], s{sOA}')
    if TM & 2:
        e(f's_load_dword s101, s[{sPB}:{sPB + 1}], s{sOB}')
    e(f's_mov_b32 s{SX}, s4')
    e(f's_mov_b32 s{SX + 1}, s5')
    e(f's_mov_b32 s{sRO}, s{sCNT}' if opt.get('rot', 1) else f's_mov_b32 s{sRO}, 0')
    dma_x(0)
    nst(1)
    e(f's_load_dword s{sTAG}, s[28:29], {WS_E}')
    e(f's_bitcmp1_b32 s{sCGI}, 1')
    e('s_cbranch_scc0 L_qkv')
    vm_common = list(g.vm)

    FW = {2: 4, 0: 13, 1: 16}
    QW = {2: 4, 0: 0, 1: 2}

    def f_stage_w(s):
        for j in range(3):
            dma_w1(f'st{s}', s, 2752, 128 if j else None, FW[s % 3] + j, vWA if j < 2 else vWA2)

    def q_stage_w(s):
        dma_w1(f'st{s}', s, 3072, None, QW[s % 3], vWA2)
        dma_w1(f'st{s}', s, 3072, 1024, QW[s % 3] + 1, vWA2)

    e(f's_mov_b32 s{SW1}, s14')
    e(f's_mov_b32 s{SW1 + 1}, s15')
    e(f's_mov_b32 s{SW1 + 2}, {512 * 2752}')
    e(f's_movk_i32 s{sT2}, 2752')
    e(f'v_mad_u32_u24 v{vWA}, v{ta}, s{sT2}, v{vWA2}')
    e(f's_mul_i32 s{sT2}, s{sGRP}, 43')
    e(f's_add_u32 s{sT3}, s{sT2}, 50')
    e(f's_add_u32 s{sT2}, s{sT2}, 7')
    e(f's_lshr_b32 s{sT2}, s{sT2}, 3')
    e(f's_lshr_b32 s{sT3}, s{sT3}, 3')
    e(f's_sub_u32 s{sT3}, s{sT3}, s{sT2}')
    e(f's_lshl_b32 s{sWO_}, s{sT2}, 6')
    e(f'v_cmp_lt_u32 vcc, 63, v{vWA2}')
    e(f's_cmp_eq_u32 s{sT3}, 5')
    e(f's_cselect_b32 s3, {OOB}, 0')
    e(f'v_mov_b32 v{tb_}, s3')
    e(f'v_cndmask_b32 v{tb_}, 0, v{tb_}, vcc')
    e(f'v_add_u32 v{vWA2}, v{vWA}, v{tb_}')
    f_stage_w(0)
    nst(2)
    e('s_branch L_ffn')
    vm_ffn = list(g.vm)

    def setup_common():
        e(f's_lshl_b32 s{sTT}, s{sT0}, 2')
        e(f's_lshr_b32 s{sT2}, s{sT1}, 3')
        e(f's_add_u32 s{sTT}, s{sTT}, s{sT2}')
        e(f's_and_b32 s{sT2}, s{sT1}, 1')
        e(f's_lshl_b32 s{sT2}, s{sT2}, 1')
        e(f's_xor_b32 s{sTT}, s{sTT}, s{sT2}')
        e(f's_and_b32 s{sW2O}, s{sT1}, 7')
        e(f's_lshl_b32 s{sW2O}, s{sW2O}, 7')
        e(f's_mov_b32 s{sC}, {hex(LOG2E)}')
        e(f's_mul_i32 s{sR2}, s{sT0}, {opt.get("r2a", 21)}')
        e(f's_lshr_b32 s{sT2}, s{sT1}, {opt.get("r2s", 0)}')
        e(f's_and_b32 s{sT2}, s{sT2}, 7')
        e(f's_mul_i32 s{sR3}, s{sT2}, {opt.get("r2b", 0)}')
        e(f's_add_u32 s{sR2}, s{sR2}, s{sR3}')
        e(f's_lshr_b32 s{sR2}, s{sR2}, 3')
        e(f's_cmp_ge_u32 s{sR2}, 21')
        e(f's_cselect_b32 s{sR3}, 21, 0')
        e(f's_sub_u32 s{sR2}, s{sR2}, s{sR3}')
        e(f's_mul_i32 s{sR3}, s{sT0}, {opt.get("r3a", 1)}')
        e(f's_mul_i32 s{sT2}, s{sT2}, {opt.get("r3b", 0)}')
        e(f's_add_u32 s{sR3}, s{sR3}, s{sT2}')
        mksrd(SW2, 18, 1376 * 1024)
        mksrd(SWO, 10, 512 * 1024)
        mksrd(SWS, 28, WS_SIZE)
        mksrd(SOUT, 24, 2048 * 1024)
        a, b, d = ta, tb_, td
        e(f'v_and_b32 v{a}, 31, v{vL}')
        e(f'v_bfe_u32 v{b}, v{vL}, 1, 3')
        e(f'v_lshrrev_b32 v{d}, 5, v{vL}')
        e(f'v_lshlrev_b32 v{d}, 1, v{d}')
        e(f'v_xor_b32 v{b}, v{b}, v{d}')
        e(f'v_lshlrev_b32 v{b}, 4, v{b}')
        e(f'v_lshl_add_u32 v{b}, v{a}, 7, v{b}')
        e(f's_and_b32 s{sT0}, s{sW}, 3')
        e(f's_lshl_b32 s{sT0}, s{sT0}, 12')
        e(f's_add_u32 s{sT0}, s{sT0}, {XBASE}')
        e(f'v_add_u32 v{vXR}, s{sT0}, v{b}')
        e(f'v_xor_b32 v{vXR + 1}, 16, v{vXR}')
        e(f'v_xor_b32 v{vXR + 2}, 64, v{vXR}')
        e(f'v_xor_b32 v{vXR + 3}, 0x50, v{vXR}')
        e(f'v_and_b32 v{a}, 3, v{vL}')
        e(f'v_lshlrev_b32 v{a}, 3, v{a}')
        e(f'v_bfe_u32 v{b}, v{vL}, 4, 1')
        e(f'v_lshl_add_u32 v{a}, v{b}, 5, v{a}')
        e(f'v_bfe_u32 v{b}, v{vL}, 3, 1')
        e(f'v_lshl_add_u32 v{a}, v{b}, 6, v{a}')
        e(f'v_bfe_u32 v{b}, v{vL}, 2, 2')
        e(f'v_lshl_add_u32 v{a}, v{b}, 7, v{a}')
        e(f'v_lshrrev_b32 v{b}, 5, v{vL}')
        e(f'v_lshl_add_u32 v{vT + 3}, v{b}, 9, v{a}')
        e(f'v_lshl_add_u32 v{a}, v{b}, 11, v{a}')
        e(f's_lshr_b32 s{sT0}, s{sW}, 2')
        e(f's_lshl_b32 s{sT0}, s{sT0}, 6')
        e(f'v_xor_b32 v{vT}, s{sT0}, v{a}')
        e(f'v_add_u32 v{vT + 1}, 0x10000, v{vT}')
        e(f'v_add_u32 v{vT + 2}, 0x20000, v{vT}')
        e(f's_lshl_b32 s{sT0}, s{sTT}, 1')
        e(f's_lshr_b32 s{sT1}, s{sW}, 2')
        e(f's_add_u32 s{sT0}, s{sT0}, s{sT1}')
        e(f's_mul_i32 s{sT0}, s{sT0}, {ACT_TB}')
        e(f's_and_b32 s{sT1}, s{sW1K}, 0xc00')
        e(f's_add_u32 s{sT0}, s{sT0}, s{sT1}')
        e(f'v_add_u32 v{vHA}, s{sT0}, v{vL16}')

    def make_tag():
        e(f's_mul_i32 s{sTAG}, s{sTAG}, 1664525')
        e(f's_add_u32 s{sTAG}, s{sTAG}, 1013904223')
        e(f's_xor_b32 s{sTAG + 1}, s{sTAG}, 0x9e3779b9')

    def trd(dst, base, slot, ks, v, tag):
        off = slot * SLOT + ((32 * (ks >> 1) + 8 * (ks & 1) + 4 * v) * 128 if ks is not None else 1024 * v)
        g.ds(f'ds_read_b64_tr_b16 {vr(dst + 2 * v, 2)}, v{base + (off >> 16)} offset:{off & 0xffff}', tag)

    def mfma(d, a, b, cc):
        e(f'v_mfma_f32_32x32x16_bf16 {vr(d, 16)}, {vr(a, 4)}, {vr(b, 4)}, {cc if isinstance(cc, str) else vr(cc, 16)}')

    def mainloop(nW, xreg, wreg, wslot, mm, dmaq, fills):
        def reads(n, j):
            s, ks = n >> 2, n & 3
            if j == 0:
                g.ds(f'ds_read_b128 {vr(xreg(n), 4)}, v{vXR + ks} offset:{XS[s % 3] * SLOT - XBASE}', f'r{n}_0')
            for v in range(2):
                trd(wreg(n, j), vT, wslot(s) + j, ks, v, f'r{n}_{j}')
        if opt.get('nodma'):
            dmaq = {k: [] for k in dmaq}
        if opt.get('nomm'):
            mm = lambda n, j: None
        if opt.get('nords'):
            reads = lambda n, j: None
        for n in range(2):
            for j in range(nW):
                reads(n, j)
        cur, left, tot, done = dmaq[0], 3 * nW, len(dmaq[0]), 0
        span = left
        for n in range(32):
            s, ks = n >> 2, n & 3
            fq = fills.get(n, [])
            nf = len(fq)
            for j in range(nW):
                g.wait(lg=f'r{n}_{j}')
                mm(n, j)
                if ks != 2 and n + 2 < 32:
                    reads(n + 2, j)
                if left:
                    left -= 1
                    k = -(-(span - left) * tot // span) - done
                    g.play(cur, k)
                    done += k
                g.play(fq, (j + 1) * nf // nW - j * nf // nW)
            if ks == 2:
                assert not cur
                g.wait(vm=f'st{s + 1}', lg='all')
                e('s_barrier')
                cur = dmaq[s + 1] if s + 1 < 8 else []
                tot, done, span, left = len(cur), 0, 4 * nW, 4 * nW
                if n + 2 < 32:
                    for j in range(nW):
                        reads(n + 2, j)

    def publish():
        l = g.newlab('pub')
        e(f's_cmp_lg_u32 s{sW}, 0')
        e(f's_cbranch_scc1 {l}')
        e(f'v_mov_b32 v{vPR}, s{sTAG}')
        e(f'v_mov_b32 v{vPR + 1}, s{sTAG + 1}')
        e('s_mov_b64 exec, 1')
        g.vmop(f'buffer_store_dwordx2 {vr(vPR, 2)}, v{vL16}, {srd(SWS)}, s{sT1} offen sc1', 'flag', cond=True)
        e('s_mov_b64 exec, -1')
        g.lab(l)

    def p1flag_off():
        e(f's_lshl_b32 s{sT1}, s{sTG}, 4')
        e(f's_add_u32 s{sT1}, s{sT1}, s{sCGI}')
        e(f's_lshl_b32 s{sT1}, s{sT1}, 7')
        e(f's_add_u32 s{sT1}, s{sT1}, {WS_FP1}')

    def xm(mask):
        return '-1' if mask == -1 else hex(mask)

    def probe(mask, cond=False):
        def f():
            e(f's_mov_b64 exec, {xm(mask)}')
            g.vmop(f'buffer_load_dwordx2 {vr(vPR, 2)}, v{vFO}, {srd(SWS)}, s{sFL} offen sc1', 'probe', cond)
            e('s_mov_b64 exec, -1')
        g.atomic(f)

    def check(mask):
        l, x = g.newlab('poll'), g.newlab('pollx')
        e(f's_mov_b32 s{sCNT}, 0')
        e(f's_mov_b64 exec, {xm(mask)}')
        g.wait(vm='probe')
        g.lab(l)
        e(f'v_cmp_ne_u64 vcc, s[{sTAG}:{sTAG + 1}], {vr(vPR, 2)}')
        e(f's_cbranch_vccz {x}')
        e(f'buffer_load_dwordx2 {vr(vPR, 2)}, v{vFO}, {srd(SWS)}, s{sFL} offen sc1')
        e(f's_add_u32 s{sCNT}, s{sCNT}, 1')
        e(f's_cmp_lt_u32 s{sCNT}, 0x40000')
        e('s_waitcnt vmcnt(0)')
        e(f's_cbranch_scc1 {l}')
        g.lab(x)
        e('s_mov_b64 exec, -1')

    def softmax(P, O, t):
        e(f'v_max3_f32 v{t}, v{P}, v{P + 1}, v{P + 2}')
        e(f'v_max3_f32 v{t + 1}, v{P + 3}, v{P + 4}, v{P + 5}')
        for i in range(6, 16, 2):
            k = t + ((i >> 1) & 1)
            e(f'v_max3_f32 v{k}, v{k}, v{P + i}, v{P + i + 1}')
        e(f'v_max_f32 v{t}, v{t}, v{t + 1}')
        e(f'v_mul_f32 v{t}, s{sC}, v{t}')
        for i in range(0, 16, 2):
            e(f'v_pk_fma_f32 {vr(P + i, 2)}, {vr(P + i, 2)}, s[{sC}:{sC + 1}], {vr(t, 2)} op_sel_hi:[1,0,0] neg_lo:[0,0,1] neg_hi:[0,0,1]')
        for i in range(16):
            e(f'v_exp_f32 v{P + i}, v{P + i}')
            if i == 5:
                e(f'v_pk_add_f32 {vr(t, 2)}, {vr(P, 2)}, {vr(P + 2, 2)}')
            if i > 5 and i & 1:
                e(f'v_pk_add_f32 {vr(t, 2)}, {vr(t, 2)}, {vr(P + i - 3, 2)}')
        e(f'v_pk_add_f32 {vr(t, 2)}, {vr(t, 2)}, {vr(P + 14, 2)}')
        e(f'v_add_f32 v{t}, v{t}, v{t + 1}')
        e(f'v_rcp_f32 v{t}, v{t}')
        g.nop(1)
        for i in range(0, 16, 2):
            e(f'v_pk_mul_f32 {vr(P + i, 2)}, {vr(P + i, 2)}, {vr(t, 2)} op_sel_hi:[1,0]')
        for i in range(8):
            e(f'v_cvt_pk_bf16_f32 v{O + i}, v{P + 2 * i}, v{P + 2 * i + 1}')

    def pack16(dst, src):
        for i in range(8):
            e(f'v_cvt_pk_bf16_f32 v{dst + i}, v{src + 2 * i}, v{src + 2 * i + 1}')

    def p2_bases():
        e(f's_and_b32 s{sT0}, s{sW2K}, 0x1800')
        e('s_nop 1')
        e(f'v_add_u32 v{vT + 3}, s{sT0}, v{vT + 3}')
        e(f'v_add_u32 v{vT + 4}, 0x10000, v{vT + 3}')
        e(f'v_add_u32 v{vT + 5}, 0x20000, v{vT + 3}')
        e(f'v_xor_b32 v{vU}, 64, v{vT + 3}')
        e(f'v_add_u32 v{vU + 1}, 0x10000, v{vU}')
        e(f'v_add_u32 v{vU + 2}, 0x20000, v{vU}')
        e(f'v_lshlrev_b32 v{vFO}, 7, v{vL}')

    def p2_wread(dst, st):
        for nb in range(2):
            for v in range(2):
                trd(dst + 4 * nb, vU if nb else vT + 3, w2slot(st), None, v, f'w{st}')

    def w2_move():
        for st in range(11):
            p2_wread(vWR + 8 * st, st)

    def colperm_addr(dst):
        e(f'v_lshrrev_b32 v{td}, 5, v{vL}')
        e(f'v_lshlrev_b32 v{td}, 28, v{td}')
        e(f'v_lshl_add_u32 v{dst}, v{vL}, 1, v{td}')

    vAB, vAA = 32, 64
    vH = 216
    NH = 10
    NL = opt.get('nl', 5)
    vWL = 96
    vB2 = 112
    vCP = 25

    def fl_p1():
        e(f's_lshr_b32 s{sFL}, s{sTT}, 1')
        e(f's_lshl_b32 s{sFL}, s{sFL}, 11')
        e(f's_add_u32 s{sFL}, s{sFL}, {WS_FP1}')

    def p2_bias():
        mksrd(SSM, 20, 1024)
        e(f's_and_b32 s{sT2}, s{sW}, 3')
        e(f's_cselect_b32 s{sT0}, {OOB}, 0')
        e(f's_add_u32 s{sT0}, s{sT0}, s{sW2O}')
        for i in range(2):
            g.vmop(f'buffer_load_ushort v{vB2 + 4 * i}, v{vCP}, {srd(SSM)}, s{sT0} offen offset:{64 * i}', 'b2')
            for k in range(1, 4):
                e(f'v_mov_b32 v{vB2 + 4 * i + k}, 0')
        for k in range(4):
            e(f'v_mov_b32 v{vB2 + 8 + k}, 0x3f803f80')
        e(f's_cmp_ge_u32 s{sT2}, 2')
        e(f's_cselect_b32 s3, {OOB}, 0')
        e(f's_add_u32 s3, s3, {WS_ACT + 21 * 4096}')

    def hreg(st):
        return vH + 4 * (st % NH) if st < 22 else vWR + 4 * (st - 22)

    def hload(st):
        if st == 21:
            g.vmop(f'buffer_load_dwordx4 {vr(hreg(st), 4)}, v{vHA}, {srd(SWS)}, s3 offen sc1', f'h{st}')
        else:
            p2stage(st, 12)
            e(f's_add_u32 s{sD}, s{sD}, {WS_ACT + (0 if st < 22 else 22 * 4096)}')
            g.vmop(f'buffer_load_dwordx4 {vr(hreg(st), 4)}, v{vHA}, {srd(SWS)}, s{sD} offen sc1', f'h{st}')

    g.lab('L_qkv')
    g.vm = list(vm_common)
    c('================ QKV workgroup')
    vX = 128
    vAK, vAV = 32, 48
    vF = 64
    vSEL, vAPHI = 80, 88
    vSA, vZS = 20, 24
    e(f's_mov_b32 s{SW1}, s6')
    e(f's_mov_b32 s{SW1 + 1}, s7')
    e(f's_mov_b32 s{SW1 + 2}, {512 * 3072}')
    e(f's_movk_i32 s{sT2}, 3072')
    e(f'v_mad_u32_u24 v{vWA}, v{ta}, s{sT2}, v{vWA2}')
    e(f's_lshl_b32 s{sWO_}, s{sGRP}, 7')
    e(f'v_add_u32 v{vWA2}, 1024, v{vWA}')
    q_stage_w(0)
    nst(2)
    l = g.newlab('wphi')
    e(f's_cmp_gt_u32 s{sW}, 1')
    e(f's_cbranch_scc1 {l}')
    mksrd(SSM, 8, 32 * 512)
    e(f's_add_u32 m0, s{sW1K}, {L_WPHI}')
    e(f's_lshl_b32 s{sT2}, s{sGRP}, 11')
    e(f's_add_u32 s{sT2}, s{sT2}, s{sW1K}')
    g.vmop(f'buffer_load_dwordx4 v{vL16}, {srd(SSM)}, s{sT2} offen lds', 'st0', cond=True)
    g.lab(l)
    setup_common()
    nst(3)
    e('s_barrier')
    dma_x(1)
    q_stage_w(1)
    nst(4)
    g.stamp(1)
    g.wait(vm='st0')
    nst(5)
    g.wait(lg='all')
    e('s_barrier')
    g.stamp(2)

    def q_consts():
        a, b, d = ta, tb_, td
        make_tag()
        e(f'v_bfe_u32 v{a}, v{vL}, 2, 2')
        e(f'v_lshlrev_b32 v{a}, 5, v{a}')
        e(f'v_bfe_u32 v{b}, v{vL}, 4, 1')
        e(f'v_lshl_add_u32 v{a}, v{b}, 4, v{a}')
        e(f'v_bfe_u32 v{b}, v{vL}, 1, 1')
        e(f'v_lshl_add_u32 v{a}, v{b}, 3, v{a}')
        e(f'v_lshrrev_b32 v{b}, 5, v{vL}')
        e(f'v_lshl_add_u32 v{a}, v{b}, 7, v{a}')
        e(f's_lshr_b32 s{sT0}, s{sW}, 2')
        e(f's_lshl_b32 s{sT0}, s{sT0}, 10')
        e(f's_add_u32 s{sT0}, s{sT0}, {L_WPHI}')
        e(f'v_add_u32 v{a}, s{sT0}, v{a}')
        for h in range(2):
            for v in range(2):
                g.ds(f'ds_read_b64_tr_b16 {vr(vAPHI + 4 * h + 2 * v, 2)}, v{a} offset:{512 * h + 256 * v}', 'aphi')
        e(f'v_bfe_u32 v{a}, v{vL}, 2, 1')
        e(f'v_cmp_eq_u32 s[{sVAL}:{sVAL + 1}], v{a}, v{b}')
        e(f'v_mul_u32_u24 v{vZS}, 0x8000, v{a}')
        e(f'v_lshl_add_u32 v{vZS}, v{vZS}, 16, v{vZS}')
        e(f'v_bfe_u32 v{a}, v{vL}, 3, 2')
        e(f'v_lshlrev_b32 v{a}, 1, v{a}')
        e(f'v_bfe_u32 v{b}, v{vL}, 1, 1')
        e(f'v_add_u32 v{a}, v{a}, v{b}')
        e(f'v_and_b32 v{b}, 1, v{vL}')
        e(f'v_lshlrev_b32 v{b}, 4, v{b}')
        e(f'v_mov_b32 v{d}, 0x3f80')
        e(f'v_lshlrev_b32 v{d}, v{b}, v{d}')
        e(f'v_cndmask_b32 v{d}, 0, v{d}, s[{sVAL}:{sVAL + 1}]')
        for q in range(8):
            e(f'v_cmp_eq_u32 vcc, {q}, v{a}')
            g.nop(2)
            e(f'v_cndmask_b32 v{vSEL + q}, 0, v{d}, vcc')
        g.wait(lg='aphi')
        for i in range(8):
            e(f'v_xor_b32 v{vAPHI + i}, v{vZS}, v{vAPHI + i}')
        e(f's_mov_b32 s{sVAL}, 0xffff')
        e(f's_mov_b32 s{sVAL + 1}, 0xffff')
        e(f'v_bfe_u32 v{a}, v{vL}, 1, 2')
        e(f'v_lshrrev_b32 v{d}, 5, v{vL}')
        e(f'v_xor_b32 v{b}, v{vL}, v{d}')
        e(f'v_and_b32 v{b}, 1, v{b}')
        e(f'v_lshl_add_u32 v{a}, v{b}, 2, v{a}')
        e(f'v_lshlrev_b32 v{a}, 4, v{a}')
        e(f'v_and_b32 v{b}, 31, v{vL}')
        e(f'v_lshl_add_u32 v{a}, v{b}, 7, v{a}')
        e(f's_lshl_b32 s{sT0}, s{sW}, 12')
        e(f's_add_u32 s{sT0}, s{sT0}, {7 * SLOT}')
        e(f'v_add_u32 v{vSA}, s{sT0}, v{a}')
        for j in range(1, 4):
            e(f'v_xor_b32 v{vSA + j}, {16 * j}, v{vSA}')
        e(f'v_lshlrev_b32 v{d}, 7, v{d}')
        e(f'v_bfe_u32 v{a}, v{vL}, 2, 1')
        e(f'v_lshl_add_u32 v{d}, v{a}, 6, v{d}')
        e(f'v_bfe_u32 v{a}, v{vL}, 3, 2')
        e(f'v_lshl_add_u32 v{d}, v{a}, 4, v{d}')
        e(f'v_and_b32 v{a}, 3, v{vL}')
        e(f'v_lshl_add_u32 v{d}, v{a}, 2, v{d}')
        e(f's_lshl_b32 s{sT0}, s{sW}, 8')
        e(f's_add_u32 s{sT0}, s{sT0}, {L_ZS}')
        e(f'v_add_u32 v{vZS}, s{sT0}, v{d}')
        e(f'v_lshlrev_b32 v{a}, 1, v{a}')
        e(f'v_bfe_u32 v{b}, v{vL}, 3, 2')
        e(f'v_xor_b32 v{a}, v{a}, v{b}')
        e(f'v_and_b32 v{b}, 4, v{vL}')
        e(f'v_xor_b32 v{a}, v{a}, v{b}')
        e(f'v_lshlrev_b32 v{a}, 4, v{a}')
        e(f'v_lshrrev_b32 v{b}, 2, v{vL}')
        e(f'v_lshl_add_u32 v{a}, v{b}, 7, v{a}')
        e(f's_lshr_b32 s{sT0}, s{sW}, 1')
        e(f's_lshl_b32 s{sT0}, s{sT0}, 14')
        e(f's_and_b32 s{sT1}, s{sW2K}, 0x800')
        e(f's_add_u32 s{sT0}, s{sT0}, s{sT1}')
        e(f's_add_u32 s{sT0}, s{sT0}, {7 * SLOT}')
        e(f'v_add_u32 v{vM}, s{sT0}, v{a}')
        colperm_addr(vCP)
        e(f's_lshl_b32 s{sT0}, s{sGRP}, 4')
        e(f's_add_u32 s{sT0}, s{sT0}, s{sTG}')
        e(f's_mul_i32 s{sK1}, s{sT0}, {KVP_SZ}')
        e(f's_add_u32 s{sK1}, s{sK1}, s{sW1K}')
        e(f's_add_u32 s{sK1}, s{sK1}, {WS_KVP}')
        e(f's_lshl_b32 s{sT0}, s{sTG}, 2')
        e(f's_and_b32 s{sT1}, s{sW}, 3')
        e(f's_add_u32 s{sT0}, s{sT0}, s{sT1}')
        e(f's_mul_i32 s{sACT}, s{sT0}, {ACT_TB}')
        e(f's_lshl_b32 s{sT0}, s{sGRP}, 12')
        e(f's_add_u32 s{sACT}, s{sACT}, s{sT0}')
        e(f's_lshr_b32 s{sT0}, s{sW}, 2')
        e(f's_lshl_b32 s{sT0}, s{sT0}, 11')
        e(f's_add_u32 s{sACT}, s{sACT}, s{sT0}')
        e(f's_add_u32 s{sACT}, s{sACT}, {WS_ACT + 88 * 1024}')
        e(f's_lshl_b32 s{sFL}, s{sGRP}, 11')
        e(f's_add_u32 s{sFL}, s{sFL}, {WS_FKV}')

    def spread(q, n0, n1):
        t = len(q)
        return {n: q[(n - n0) * t // (n1 - n0):(n - n0 + 1) * t // (n1 - n0)] for n in range(n0, n1)}

    def qslot(s):
        return 13 + s if s < 6 else 5 + s

    def dma_q(s):
        dma_w1(f'q{s}', s, 3072, None, qslot(s), vWA, own=True)

    dmaq = {s: g.capture(lambda: (dma_x(s + 2), q_stage_w(s + 2))) for s in range(6)}
    qe = opt.get('qe', 4)
    qd = opt.get('qd', 4)
    dmaq[6] = g.capture(lambda: [dma_q(s) for s in range(qd)])
    dmaq[7] = g.capture(lambda: [dma_q(s) for s in range(qd, qe)]) + w2touch(False)

    QB = [64, 72, 96]

    def q_mm(n, j):
        buf = QB[n % 3]
        if j == 0:
            mfma(vAK, buf, vX + 4 * n, '0' if n == 0 else vAK)
        else:
            mfma(vAV, vX + 4 * n, buf + 4, '0' if n == 0 else vAV)

    mainloop(2, lambda n: vX + 4 * n, lambda n, j: QB[n % 3] + 4 * j, lambda s: QW[s % 3], q_mm, dmaq,
             spread(g.capture(q_consts), 1, 28))
    g.stamp(3)
    vKB, vB0, vB1 = 64, 64, 72
    vE, vP0, vP1 = 96, 112, 120
    def kdma():
        for s_ in range(qe, 8):
            dma_q(s_)
        for st in range(7):
            dma_w2(st)
    g.half('y', kdma)
    g.nop(10)
    pack16(vKB, vAK)
    mfma(vAK, vAPHI, vKB, '0')
    g.nop(1)
    mfma(vE, vAPHI + 4, vKB + 4, '0')
    pack16(vB1, vAV)
    for i in range(8):
        e(f'v_cndmask_b32 v{vB0 + i}, 0, v{vB1 + i}, s[{sVAL}:{sVAL + 1}]')
    softmax(vAK, vP0, ta)
    e(f'v_xor_b32 v{vB1}, v{vB0}, v{vB1}')
    mfma(vAK, vP0, vSEL, '0')
    mfma(vAK, vP0 + 4, vSEL + 4, vAK)
    for i in range(1, 8):
        e(f'v_xor_b32 v{vB1 + i}, v{vB0 + i}, v{vB1 + i}')
    softmax(vE, vP1, ta)
    e(f'v_add_f32 v{ta}, v{vAK}, v{vAK + 1}')
    mfma(vE, vP1, vSEL, '0')
    mfma(vE, vP1 + 4, vSEL + 4, vE)
    pack16(vP0, vAK)
    e(f'v_add_f32 v{ta}, v{ta}, v{vAK + 2}')
    e(f'v_add_f32 v{ta}, v{ta}, v{vAK + 3}')
    mfma(vAV, vP0, vB0, '0')
    mfma(vAV, vP0 + 4, vB0 + 4, vAV)
    pack16(vP1, vE)
    e(f'v_add_f32 v{tb_}, v{vE}, v{vE + 1}')
    e(f'v_add_f32 v{tb_}, v{tb_}, v{vE + 2}')
    mfma(vAV, vP1, vB1, vAV)
    mfma(vAV, vP1 + 4, vB1 + 4, vAV)
    e(f'v_add_f32 v{tb_}, v{tb_}, v{vE + 3}')
    for i in range(4, 16):
        e(f'v_add_f32 v{ta}, v{ta}, v{vAK + i}')
        e(f'v_add_f32 v{tb_}, v{tb_}, v{vE + i}')
        if i >= 12:
            g.ds(f'ds_write_b128 v{vSA + i - 12}, {vr(vAV + 4 * (i - 12), 4)}', 'sc')
    g.nop(1)
    e(f'v_permlane32_swap_b32 v{ta}, v{tb_}')
    g.nop(1)
    e(f'v_add_f32 v{ta}, v{ta}, v{tb_}')
    g.ds(f'ds_write_b32 v{vZS}, v{ta}', 'sc')
    g.stamp('ke')
    g.half('o', kdma)
    g.half('y', lambda: g.wait(vm='q7'))
    g.wait(vm='q3', lg='all')
    e('s_barrier')
    g.stamp(4)
    lr, lz, lj = g.newlab('red'), g.newlab('redz'), g.newlab('redj')
    a, b, d = ta, tb_, td
    e(f's_cmp_gt_u32 s{sW}, 3')
    e(f's_cbranch_scc1 {lz}')
    e(f'v_xor_b32 v{b}, 16, v{vM}')
    for tb in range(4):
        e(f'ds_read_b128 {vr(vE + 8 * tb, 4)}, v{vM} offset:{tb * 4096}')
        e(f'ds_read_b128 {vr(vE + 8 * tb + 4, 4)}, v{b} offset:{tb * 4096}')
    g.lab(lj)
    e('s_waitcnt lgkmcnt(4)')
    for i in range(8):
        e(f'v_add_f32 v{vE + i}, v{vE + i}, v{vE + 8 + i}')
    e('s_waitcnt lgkmcnt(0)')
    for i in range(8):
        e(f'v_add_f32 v{vE + 16 + i}, v{vE + 16 + i}, v{vE + 24 + i}')
    for i in range(8):
        e(f'v_add_f32 v{vE + i}, v{vE + i}, v{vE + 16 + i}')
    for i in range(4):
        e(f'v_cvt_pk_bf16_f32 v{vE + 8 + i}, v{vE + 2 * i}, v{vE + 2 * i + 1}')
    g.vmop(f'buffer_store_dwordx4 {vr(vE + 8, 4)}, v{vL16}, {srd(SWS)}, s{sK1} offen sc1', 'kvst', cond='o')
    g.vm.append(('kvst', True))
    e('s_mov_b64 exec, -1')
    e(f's_branch {lr}')
    g.lab(lz)
    e(f's_cmp_gt_u32 s{sW}, 4')
    e(f's_cbranch_scc1 {lr}')
    e(f'v_bfe_u32 v{a}, v{vL}, 3, 1')
    e(f'v_lshlrev_b32 v{a}, 10, v{a}')
    e(f'v_bfe_u32 v{b}, v{vL}, 2, 1')
    e(f'v_lshl_add_u32 v{a}, v{b}, 7, v{a}')
    e(f'v_and_b32 v{b}, 3, v{vL}')
    e(f'v_lshl_add_u32 v{a}, v{b}, 5, v{a}')
    e(f'v_add_u32 v{a}, {L_ZS}, v{a}')
    e('s_mov_b64 exec, 0xffff')
    for tb in range(4):
        e(f'ds_read_b128 {vr(vE + 8 * tb, 4)}, v{a} offset:{tb * 256}')
        e(f'ds_read_b128 {vr(vE + 8 * tb + 4, 4)}, v{a} offset:{tb * 256 + 16}')
    e(f's_branch {lj}')
    g.lab(lr)

    def qq_reads(n):
        for v in range(2):
            trd(vF + 4 * (n % 4), vT, qslot(n >> 2), n & 3, v, f'q{n}')

    p2_bases()
    for n in range(3):
        qq_reads(n)
    dq = []
    for n in range(32):
        if n + 3 < 32:
            qq_reads(n + 3)
        g.wait(lg=f'q{n}')
        mfma(vAK, vF + 4 * (n % 4), vX + 4 * n, '0' if n == 0 else vAK)
        if n == 7:
            g.stamp('q7')
            g.wait(vm='q7')
            e('s_barrier')
            g.stamp('q7b')
            dq = w2q([7, 8, 9, 10, 13, 14])
        if n == 23:
            e(f's_lshl_b32 s{sT1}, s{sTG}, 7')
            e(f's_add_u32 s{sT1}, s{sT1}, s{sFL}')
            g.stamp('q23')
            g.wait(vm='kvst')
            e('s_barrier')
            g.stamp('q23b')
            publish()
            dq += w2q([15, 16, 17])
        if n in (7, 10, 12, 15, 18, 21, 24, 27, 30):
            g.play(dq, 1)
    assert not dq
    g.wait(vm='w2_10')
    e('s_barrier')
    g.stamp(5)
    rest = [18, 11, 12] + list(range(19, 30))

    def move():
        w2_move()
        g.wait(lg='all')
    g.half('y', lambda: ([dma_w2(st) for st in rest[:3]], move()))
    g.nop(8)
    pack16(vKB, vAK)
    mfma(vAK, vAPHI, vKB, '0')
    g.nop(1)
    mfma(vE, vAPHI + 4, vKB + 4, '0')
    g.half('o', lambda: probe(0xffff))
    e(f'v_lshrrev_b32 v{td}, 2, v{vL}')
    e(f'v_mul_u32_u24 v{td}, {KVP_SZ - 64}, v{td}')
    e(f'v_add_u32 v{td}, v{td}, v{vL16}')
    e(f's_mul_i32 s{sT0}, s{sGRP}, {16 * KVP_SZ}')
    e(f's_add_u32 s{sT0}, s{sT0}, {WS_KVP}')
    e(f's_lshl_b32 s{sT1}, s{sW}, 6')
    e(f's_add_u32 s{sT1}, s{sT1}, s{sT0}')
    e(f's_add_u32 s{sT1}, s{sT1}, 4096')
    e(f's_add_u32 s{sT0}, s{sT0}, s{sW1K}')
    softmax(vAK, vP0, ta)
    softmax(vE, vP1, ta)
    g.stamp(6)
    vGA = [32 + 4 * p for p in range(12)] + [216 + 4 * p for p in range(5)]
    vS = 96
    a, b, d = ta, tb_, td

    def gather():
        check(0xffff)
        g.stamp(7)
        mv = g.capture(w2_move)
        g.vmop(f'buffer_load_dwordx4 {vr(vGA[16], 4)}, v{td}, {srd(SWS)}, s{sT1} offen sc1', 'ga')
        e(f'v_and_b32 v{b}, 0x30, v{vL}')
        e(f'v_xor_b32 v{b}, v{b}, v{vL16}')
        e(f's_add_u32 s{sT1}, s{sW2K}, {L_TAB}')
        e(f'v_add_u32 v{b}, s{sT1}, v{b}')
        LAG = 9

        def acc(p):
            g.wait(vm=f'ga{p}')
            mfma(vS, vSEL, vGA[p], '0' if p == 0 else vS)
        for p in range(16):
            g.vmop(f'buffer_load_dwordx4 {vr(vGA[p], 4)}, v{vL16}, {srd(SWS)}, s{sT0} offen sc1', f'ga{p}')
            if p < 15:
                e(f's_add_u32 s{sT0}, s{sT0}, {KVP_SZ}')
            g.play(mv, 3)
            if p >= LAG:
                acc(p - LAG)
        g.wait(lg='all')
        g.stamp('gi')
        e('s_barrier')
        e(f'ds_write_b128 v{b}, {vr(vGA[16], 4)} offset:1024')
        for p in range(16 - LAG, 16):
            acc(p)
        g.stamp('gd')
        g.nop(12)
        for i in range(4):
            e(f'v_cvt_pk_bf16_f32 v{vS + 8 + i}, v{vS + 2 * i}, v{vS + 2 * i + 1}')
        e(f'ds_write_b128 v{b}, {vr(vS + 8, 4)}')
    g.half('o', gather)
    qa = opt.get('qa', 9)
    g.half('y', lambda: (e('s_barrier'), [dma_w2(st) for st in rest[3:qa]]))
    e(f'v_lshrrev_b32 v{d}, 5, v{vL}')
    e(f'v_lshlrev_b32 v{d}, 1, v{d}')
    e(f'v_bfe_u32 v{a}, v{vL}, 2, 2')
    e(f'v_xor_b32 v{d}, v{d}, v{a}')
    e(f'v_lshlrev_b32 v{d}, 4, v{d}')
    e(f'v_and_b32 v{a}, 31, v{vL}')
    e(f'v_lshl_add_u32 v{a}, v{a}, 6, v{d}')
    e(f's_and_b32 s{sT0}, s{sW1K}, 0x1000')
    e(f's_add_u32 s{sT0}, s{sT0}, {L_TAB}')
    e(f'v_add_u32 v{a}, s{sT0}, v{a}')
    e(f'v_xor_b32 v{d}, 16, v{a}')
    fl_p1()
    g.stamp('tb')
    g.wait(lg='all')
    e('s_barrier')
    g.stamp(8)
    vKA, vD0, vD1 = 32, 64, 80
    for h in range(2):
        for t in range(2):
            g.ds(f'ds_read_b128 {vr(vKA + 8 * h + 4 * t, 4)}, v{d if t else a} offset:{2048 * h}', f'k{h}{t}')
    probe(0xcccc)
    for h in range(2):
        for t in range(2):
            g.wait(lg=f'k{h}{t}')
            mfma(vD0 + 16 * h, vKA + 8 * h + 4 * t, vP0 + 8 * h + 4 * t, '0' if t == 0 else vD0 + 16 * h)
    g.nop(8)
    for h in range(2):
        D = vD0 + 16 * h
        e(f'v_add_f32 v{ta + h}, v{D + 8}, v{D + 9}')
        for i in range(10, 16):
            e(f'v_add_f32 v{ta + h}, v{ta + h}, v{D + i}')
    g.nop(2)
    e(f'v_permlane32_swap_b32 v{ta}, v{tb_}')
    g.nop(1)
    e(f'v_add_f32 v{ta}, v{ta}, v{tb_}')
    e(f'v_add_f32 v{ta}, {hex(f2u(1e-6))}, v{ta}')
    e(f'v_rcp_f32 v{ta}, v{ta}')
    g.nop(1)
    e(f'v_mov_b32 v{tb_}, v{ta}')
    g.nop(2)
    e(f'v_permlane32_swap_b32 v{ta}, v{tb_}')
    g.nop(1)
    for h in range(2):
        D = vD0 + 16 * h
        for i in range(0, 8, 2):
            e(f'v_pk_mul_f32 {vr(D + i, 2)}, {vr(D + i, 2)}, {vr(ta, 2)} op_sel:[0,{h}] op_sel_hi:[1,{h}]')
        for i in range(4):
            e(f'v_cvt_pk_bf16_f32 v{vS + 4 * h + i}, v{D + 2 * i}, v{D + 2 * i + 1}')
    g.vmop(f'buffer_store_dwordx4 {vr(vS, 4)}, v{vL16}, {srd(SWS)}, s{sACT} offen sc1', 'ost')
    g.vmop(f'buffer_store_dwordx4 {vr(vS + 4, 4)}, v{vL16}, {srd(SWS)}, s{sACT} offen offset:1024 sc1', 'ost')
    qb = opt.get('qb', 10)
    g.stamp('os')
    check(0xcccc)
    g.stamp('oc')
    g.half('o', lambda: [dma_w2(st) for st in rest[:qb]])
    p2_bias()
    p1flag_off()
    g.stamp('od')
    g.half('o', lambda: g.wait(vm='ost'))
    g.half('y', lambda: g.wait(vm='ost'))
    g.stamp('ow')
    e('s_barrier')
    publish()
    g.stamp(9)
    g.half('o', lambda: [dma_w2(st) for st in rest[qb:]])
    g.half('y', lambda: [dma_w2(st) for st in rest[qa:]])
    for st in range(NL):
        hload(st)
    e('s_branch L_p2')

    g.lab('L_ffn')
    g.vm = list(vm_ffn)
    g.lg = []
    c('================ FFN workgroup')
    vA = 32
    vF = 80
    vB = 112
    vG = 128
    sLAST = 3
    mksrd(SSM, 16, 2752)
    colperm_addr(vCP)
    e(f's_lshr_b32 s{sT2}, s{sW}, 2')
    e(f's_mul_i32 s{sLAST}, s{sLAST}, s{sT2}')
    e(f's_lshl_b32 s{sT3}, s{sT2}, 6')
    e(f's_add_u32 s{sT3}, s{sT3}, s{sWO_}')
    for i in range(3):
        g.vmop(f'buffer_load_ushort v{vB + 4 * i}, v{vCP}, {srd(SSM)}, s{sT3} offen offset:{128 * i}', 'st0')
    e(f's_lshl_b32 s{sACT}, s{sT3}, 5')
    e(f's_lshl_b32 s{sT2}, s{sTG}, 2')
    e(f's_and_b32 s{sT3}, s{sW}, 3')
    e(f's_add_u32 s{sT2}, s{sT2}, s{sT3}')
    e(f's_mul_i32 s{sT2}, s{sT2}, {ACT_TB}')
    e(f's_add_u32 s{sACT}, s{sACT}, s{sT2}')
    e(f's_add_u32 s{sACT}, s{sACT}, {WS_ACT}')
    setup_common()
    for i in range(3):
        for k in range(1, 4):
            e(f'v_mov_b32 v{vB + 4 * i + k}, 0')
    for k in range(4):
        e(f'v_mov_b32 v{vB + 12 + k}, 0x3f803f80')
    nst(3)
    e('s_barrier')
    dma_x(1)
    f_stage_w(1)
    nst(4)
    g.stamp(1)
    g.wait(vm='st0')
    nst(5)
    g.wait(lg='all')
    for j in range(3):
        mfma(vA + 16 * j, vB + 4 * j, vB + 12, '0')
    e('s_barrier')
    g.stamp(2)

    def g_loads():
        def f():
            e(f's_lshl_b32 s{sD}, s{sGRP}, 14')
            e(f's_add_u32 s{sD}, s{sD}, s{sXO}')
            e(f's_add_u32 s{sD}, s{sD}, s{sW2K}')
            g.vmop(f'buffer_load_dwordx4 {vr(vG, 4)}, v{vL16}, {srd(SX)}, s{sD} offen', 'g')
        g.atomic(f)
        g.vmop(f'buffer_load_dwordx4 {vr(vG + 4, 4)}, v{vL16}, {srd(SX)}, s{sD} offen offset:1024', 'g')
        g.vmop(f'global_load_dwordx4 {vr(vG + 8, 4)}, v{vL16}, s[22:23]', 'g')

    def g_compute():
        a, b, acc = ta, tb_, td
        make_tag()
        g.wait(vm='g')
        for i in range(4):
            for hi in range(2):
                op = (lambda d_, s_: f'v_and_b32 v{d_}, 0xffff0000, v{s_}') if hi else (lambda d_, s_: f'v_lshlrev_b32 v{d_}, 16, v{s_}')
                e(op(b, vG + 8 + i))
                for t in range(2):
                    e(op(a, vG + 4 * t + i))
                    e(f'v_mul_f32 v{acc + t}, v{a}, v{b}' if i == 0 and hi == 0 else f'v_fmac_f32 v{acc + t}, v{a}, v{b}')
        g.nop(2)
        e(f'v_permlane32_swap_b32 v{acc}, v{acc + 1}')
        g.nop(1)
        e(f'v_add_f32 v{acc}, v{acc}, v{acc + 1}')
        for r in (1, 2, 4, 8):
            g.nop(2)
            e(f'v_add_f32_dpp v{acc}, v{acc}, v{acc} row_ror:{r} row_mask:0xf bank_mask:0xf')
        e(f'v_mov_b32 v{a}, v{acc}')
        g.nop(2)
        e(f'v_permlane16_swap_b32 v{a}, v{acc}')
        g.nop(1)
        e(f'v_add_f32 v{acc}, v{acc}, v{a}')
        e(f'v_mul_f32 v{acc}, {hex(LOG2E | 0x80000000)}, v{acc}')
        e(f'v_exp_f32 v{acc}, v{acc}')
        g.nop(1)
        e(f'v_add_f32 v{acc}, 1.0, v{acc}')
        e(f'v_rcp_f32 v{acc}, v{acc}')
        e(f'v_lshrrev_b32 v{a}, 3, v{vL}')
        e(f's_lshl_b32 s{sT0}, s{sTG}, 9')
        e(f's_lshl_b32 s{sT1}, s{sGRP}, 6')
        e(f's_add_u32 s{sT0}, s{sT0}, s{sT1}')
        e(f's_lshl_b32 s{sT1}, s{sW}, 3')
        e(f's_add_u32 s{sT0}, s{sT0}, s{sT1}')
        e(f's_add_u32 s{sT0}, s{sT0}, {WS_G}')

        def st():
            e('s_mov_b32 exec_lo, 1')
            e('s_mov_b32 exec_hi, 1')
            g.vmop(f'buffer_store_dword v{acc}, v{a}, {srd(SWS)}, s{sT0} offen sc1', 'ost')
            e('s_mov_b64 exec, -1')
        g.atomic(st)
        K0 = -2.0 * 0.7978845608028654 * 1.4426950408889634
        e(f's_mov_b32 s{sK1}, {hex(f2u(K0 * 0.044715))}')
        e(f'v_mov_b32 v{vM}, {hex(f2u(K0))}')
        fl_p1()

    dmaq = {s: g.capture(lambda: (dma_x(s + 2), f_stage_w(s + 2))) for s in range(6)}
    dmaq[2] = g.capture(g_loads) + dmaq[2]
    fa, fb = opt.get('fa', 3), opt.get('fb', 5)
    dmaq[6] = w2touch(True) + w2q(range(fa))
    dmaq[7] = w2q(range(fa, fb))

    FB = [80, 96, 144]

    def f_mm(n, j):
        buf = FB[n % 3]
        mfma(vA + 16 * j, buf + 4 + 4 * j, buf, vA + 16 * j)

    mainloop(3, lambda n: FB[n % 3], lambda n, j: FB[n % 3] + 4 + 4 * j, lambda s: FW[s % 3], f_mm, dmaq,
             spread(g.capture(g_compute), 16, 28))
    g.stamp(3)
    p2_bases()
    g.nop(2)
    vE = 80

    def gelu(j):
        A = vA + 16 * j
        P = lambda r: vr(r, 2)
        for i in range(0, 16, 2):
            e(f'v_pk_mul_f32 {P(vE + i)}, {P(A + i)}, {P(A + i)}')
        for i in range(0, 16, 2):
            e(f'v_pk_fma_f32 {P(vE + i)}, {P(vE + i)}, s[{sK1 - 1}:{sK1}], {P(vM - 1)} op_sel:[0,1,1] op_sel_hi:[1,1,1]')
        for i in range(0, 16, 2):
            e(f'v_pk_mul_f32 {P(vE + i)}, {P(vE + i)}, {P(A + i)}')
        for i in range(16):
            e(f'v_exp_f32 v{vE + i}, v{vE + i}')
        for i in range(0, 16, 2):
            e(f'v_pk_add_f32 {P(vE + i)}, {P(vE + i)}, 1.0 op_sel_hi:[1,0]')
        for i in range(16):
            e(f'v_rcp_f32 v{vE + i}, v{vE + i}')
        for i in range(0, 16, 2):
            e(f'v_pk_mul_f32 {P(vE + i)}, {P(vE + i)}, {P(A + i)}')
        pack16(A, vE)

    HF = ['sc1', '', 'sc1 nt', 'sc0 sc1'][opt.get('hf', 0)]

    def hstore(j):
        A = vA + 16 * j
        e(f's_add_u32 s{sT0}, s{sACT}, {4096 * j}')
        if j == 2:
            e(f's_add_u32 s{sT0}, s{sT0}, s{sLAST}')
        g.vmop(f'buffer_store_dwordx4 {vr(A, 4)}, v{vL16}, {srd(SWS)}, s{sT0} offen {HF}', 'ost')
        g.vmop(f'buffer_store_dwordx4 {vr(A + 4, 4)}, v{vL16}, {srd(SWS)}, s{sT0} offen offset:1024 {HF}', 'ost')

    fc = opt.get('fc', 14)

    def fdma():
        for st in range(fb, fc):
            dma_w2(st)
    g.half('y', fdma)
    g.stamp('fy')
    for j in range(3):
        gelu(j)
        g.stamp(f'g{j}')
        hstore(j)
        g.stamp(f's{j}')
    g.stamp(4)
    g.half('o', fdma)
    g.stamp('fo')
    p1flag_off()
    g.half('o', lambda: g.wait(vm=['ost', 'w2_10']))
    g.half('y', lambda: g.wait(vm=['ost', 'w2_10']))
    g.stamp('fw')
    e('s_barrier')
    publish()
    g.stamp(5)
    g.weave(g.capture(w2_move), w2q(range(fc, 19)))
    g.wait(lg='all')
    e('s_barrier')
    g.play(w2q(range(19, 30)))
    g.stamp(6)
    p2_bias()
    probe(0xcccc)
    check(0xcccc)
    g.stamp(9)
    for st in range(NL):
        hload(st)

    g.lab('L_p2')
    g.vm = [(f'h{st}', False) for st in range(NL)]
    g.lg = []
    c('================ phase 2')
    g.stamp(10)
    vGV = vM
    vRA = 20
    RS = opt.get('rs', 11)

    def tail_consts():
        a, b, d = ta, tb_, td
        e(f's_lshl_b32 s{sT0}, s{sTT}, 1')
        e(f's_lshr_b32 s{sT1}, s{sW}, 2')
        e(f's_add_u32 s{sT0}, s{sT0}, s{sT1}')
        e(f's_lshl_b32 s{sT0}, s{sT0}, 7')
        e(f's_add_u32 s{sT0}, s{sT0}, {WS_G}')
        e(f'v_and_b32 v{a}, 31, v{vL}')
        e(f'v_lshlrev_b32 v{b}, 2, v{a}')
        g.vmop(f'buffer_load_dword v{vGV}, v{b}, {srd(SWS)}, s{sT0} offen sc1', 'gv')
        e(f'v_and_b32 v{b}, 15, v{vL}')
        e(f'v_lshrrev_b32 v{d}, 5, v{vL}')
        e(f'v_xor_b32 v{b}, v{b}, v{d}')
        e(f'v_lshlrev_b32 v{b}, 4, v{b}')
        e(f'v_lshl_add_u32 v{a}, v{a}, 8, v{b}')
        e(f's_and_b32 s{sT0}, s{sW}, 3')
        e(f's_lshl_b32 s{sT0}, s{sT0}, 14')
        e(f's_lshl_b32 s{sT1}, s{sT1}, 13')
        e(f's_add_u32 s{sT0}, s{sT0}, s{sT1}')
        e(f's_add_u32 s{sT0}, s{sT0}, {RS * SLOT}')
        e(f'v_add_u32 v{vRA}, s{sT0}, v{a}')
        e(f'v_lshrrev_b32 v{a}, 3, v0')
        e(f'v_and_b32 v{b}, 7, v0')
        e(f'v_lshlrev_b32 v{d}, 4, v{b}')
        e(f'v_lshl_add_u32 v{vRA + 3}, v{a}, 10, v{d}')
        e(f'v_lshlrev_b32 v{b}, 1, v{b}')
        e(f'v_and_b32 v{d}, 15, v{a}')
        e(f'v_xor_b32 v{b}, v{b}, v{d}')
        e(f'v_lshlrev_b32 v{b}, 4, v{b}')
        e(f'v_lshl_add_u32 v{a}, v{a}, 8, v{b}')
        e(f'v_add_u32 v{vRA + 1}, {RS * SLOT}, v{a}')
        e(f'v_xor_b32 v{vRA + 2}, 16, v{vRA + 1}')
        e(f's_lshl_b32 s{sACT}, s{sTT}, 16')
        e(f's_add_u32 s{sACT}, s{sACT}, s{sW2O}')
        e(f's_lshl_b32 s{sK1}, s2, 3')
        e(f's_add_u32 s{sK1}, s{sK1}, s{sW}')

    def prescale():
        g.wait(vm='gv')
        e(f'v_sub_f32 v{vRA + 4}, 1.0, v{vGV}')
        for i in range(32):
            e(f'v_mul_f32 v{vAB + i}, v{vRA + 4}, v{vAB + i}')

    fills = spread(g.capture(tail_consts), 1, 9)
    fills.update(spread(g.capture(prescale), 24, 30))
    nxt = NL
    OC = 22 - NL
    OPR = OC - opt.get('opr', NL - 1)
    for st in range(30):
        if 11 <= st + 1 < 30:
            p2_wread(vWL + 8 * ((st + 1) & 1), st + 1)
        g.wait(vm=f'h{st}', lg=f'w{st}')
        if st == 0:
            for nb in range(2):
                mfma(vAB + 16 * nb, vB2 + 4 * nb, vB2 + 8, '0')
        w = vWR + 8 * st if st < 11 else vWL + 8 * (st & 1)
        acc = vAB if st < 22 else vAA
        fq = fills.get(st, [])
        mfma(acc, w, hreg(st), '0' if st == 22 else acc)
        g.play(fq, len(fq) // 2)
        mfma(acc + 16, w + 4, hreg(st), '0' if st == 22 else acc + 16)
        g.play(fq)
        if st == 8:
            e('s_barrier')
        if st == 20:
            e('s_barrier')
        if st == OPR:
            lE = g.newlab('ep')
            e(f's_cmp_lg_u32 s{sK1}, 2047')
            e(f's_cbranch_scc1 {lE}')
            vm_save = list(g.vm)
            e(f'v_lshrrev_b32 v{ta}, 1, v{vL}')
            e(f'v_and_b32 v{tb_}, 1, v{vL}')
            e(f'v_lshl_add_u32 v{ta}, v{ta}, 2, v{tb_}')
            e(f'v_lshlrev_b32 v{vFO}, 7, v{ta}')
            for k in range(2):
                e(f's_mov_b32 s{sFL}, {WS_FP1 + 256 + k * 16384}')
                probe(-1)
                check(-1)
            e(f'v_lshlrev_b32 v{vFO}, 7, v{vL}')
            fl_p1()
            g.vm = vm_save
            g.lab(lE)
            probe(0x3333)
        if st == OC:
            g.stamp(11)
            check(0x3333)
            g.stamp(12)
            for k in range(opt.get('ob', 2)):
                hload(nxt)
                nxt += 1
            lE = g.newlab('ep')
            e(f's_cmp_lg_u32 s{sK1}, 2047')
            e(f's_cbranch_scc1 {lE}')
            e(f'v_mov_b32 v{vPR}, s{sTAG}')
            e('s_mov_b64 exec, 1')
            g.vmop(f'buffer_store_dword v{vPR}, v{vL16}, {srd(SWS)}, 0 offen sc1', 'ep', cond=True)
            e('s_mov_b64 exec, -1')
            g.lab(lE)
        if nxt < 30:
            hload(nxt)
            nxt += 1
    g.stamp(13)
    for q in range(1, 8):
        e(f'v_xor_b32 v{vWL + q}, {32 * q}, v{vRA}')
    g.nop(2)
    for q in range(8):
        for i in range(4 * q, 4 * q + 4):
            e(f'v_fmac_f32 v{vAB + i}, v{vGV}, v{vAA + i}')
        e(f'ds_write_b128 v{vWL + q if q else vRA}, {vr(vAB + 4 * q, 4)}')
    e('s_waitcnt lgkmcnt(0)')
    e('s_barrier')
    R = 32
    for k in range(4):
        e(f'ds_read_b128 {vr(R + 8 * k, 4)}, v{vRA + 1} offset:{k * 16384}')
        e(f'ds_read_b128 {vr(R + 8 * k + 4, 4)}, v{vRA + 2} offset:{k * 16384}')
    for k in range(1, 4):
        e(f's_waitcnt lgkmcnt({6 - 2 * k})')
        for i in range(0, 8, 2):
            e(f'v_pk_add_f32 {vr(R + i, 2)}, {vr(R + i, 2)}, {vr(R + 8 * k + i, 2)}')
    for i in range(4):
        e(f'v_cvt_pk_bf16_f32 v{R + 8 + i}, v{R + 2 * i}, v{R + 2 * i + 1}')
    e(f'buffer_store_dwordx4 {vr(R + 8, 4)}, v{vRA + 3}, {srd(SOUT)}, s{sACT} offen {["", "sc1", "nt", "sc0 sc1", "sc1 nt"][opt.get("of", 0)]}')
    if opt.get('stamps'):
        e('s_waitcnt vmcnt(0)')
        g.stamp(14)
        e('s_memrealtime s[98:99]')
        e('s_waitcnt lgkmcnt(0)')
        e('s_mov_b32 s97, s98')
        e(f's_lshl_b32 s{sT0}, s2, 3')
        e(f's_add_u32 s{sT0}, s{sT0}, s{sW}')
        e(f's_lshl_b32 s{sT0}, s{sT0}, 7')
        e(f's_add_u32 s{sT0}, s{sT0}, {WS_STAMP}')
        e('s_mov_b64 exec, 1')
        for i in range(18):
            e(f'v_mov_b32 v{ta}, s{80 + i}')
            e(f'buffer_store_dword v{ta}, v{vL16}, {srd(SWS)}, s{sT0} offen offset:{4 * i}')
    g.lab('L_end')
    e('s_endpgm')
    return g.L


HEAD = open('cdna_kernels/' + NAME + '.s.ref').read().split('; Override')[0]


def spinner(opt):
    if opt.get('list') != 4:
        return ''
    A, B, C, sh = opt.get('sa', 17), opt.get('sb', 16), opt.get('sc', -1), opt.get('sh', 0)
    L = ['s_cmp_lg_u32 s2, 0', 's_cbranch_scc1 L_spe', 's_load_dwordx2 s[4:5], s[0:1], 96', 'v_lshlrev_b32 v1, 10, v0',
         f'v_add_u32 v1, {WS_STAMP}, v1', 'v_mov_b32 v4, 0', 'v_mov_b32 v5, -1', 's_waitcnt lgkmcnt(0)']
    for k in range(4):
        L += [f'global_load_dword v2, v1, s[4:5] offset:{4 * A}', f'global_load_dword v3, v1, s[4:5] offset:{4 * max(B, 0)}',
              f'global_load_dword v6, v1, s[4:5] offset:{4 * max(C, 0)}', 'v_add_u32 v1, 0x10000, v1', 's_waitcnt vmcnt(0)']
        if C >= 0:
            L += ['v_sub_u32 v2, v2, v6']
        if not (opt.get('half') == 1 and k >= 2) and not (opt.get('half') == 2 and k < 2):
            L += ['v_max_u32 v4, v4, v2', 'v_min_u32 v5, v5, v3']
    L += ['s_mov_b32 s6, 0', 's_mov_b32 s7, -1', 's_nop 4']
    for i in range(64):
        L += [f'v_readlane_b32 s8, v4, {i}', f'v_readlane_b32 s9, v5, {i}', 's_nop 1', 's_max_u32 s6, s6, s8', 's_min_u32 s7, s7, s9']
    if B >= 0:
        L += ['s_sub_u32 s6, s6, s7']
    L += [f's_lshr_b32 s6, s6, {sh}', f's_mul_i32 s6, s6, {opt.get("mul", 1)}', 's_min_u32 s6, s6, 20000', 's_memrealtime s[8:9]', 's_waitcnt lgkmcnt(0)', 'L_spl:',
          's_memrealtime s[10:11]', 's_waitcnt lgkmcnt(0)', 's_sub_u32 s10, s10, s8', 's_cmp_lt_u32 s10, s6', 's_cbranch_scc1 L_spl', 'L_spe:']
    return ''.join('  ' + x + '\n' for x in L)


def emit(opt):
    body = build(opt)
    s = HEAD
    main = f'; @launch kernel={NAME}_kernel grid=(256,1,1) block=(512,1,1) lds={LDS_BYTES}\n'
    emp = '; @launch kernel=empty_kernel grid=(256,1,1) block=(64,1,1) lds=0\n'
    if opt.get('list') == 1:
        s += main + emp
    elif opt.get('list') == 2:
        s += emp + main
    elif opt.get('list') == 3:
        s += main + main
    elif opt.get('list') == 4:
        s += main + '; @launch kernel=empty_kernel grid=(1,1,1) block=(64,1,1) lds=0\n'
    else:
        s += f'; @launch grid=(256,1,1) block=(512,1,1) lds={LDS_BYTES}\n'
    s += '.amdgcn_target "amdgcn-amd-amdhsa--gfx950"\n.text\n'
    s += f'.globl {NAME}_kernel\n.p2align 8\n.type {NAME}_kernel,@function\n{NAME}_kernel:\n'
    s += '\n'.join(body) + '\n'
    s += '; padding so that the code prefetch stays inside the section\n.fill 8192, 4, 0xbf800000\n'
    s += f'''.section .rodata,"a"
.p2align 6
.amdhsa_kernel {NAME}_kernel
  .amdhsa_next_free_vgpr 256
  .amdhsa_next_free_sgpr 102
  .amdhsa_accum_offset 256
  .amdhsa_group_segment_fixed_size 0
  .amdhsa_kernarg_size 104
  .amdhsa_user_sgpr_count 2
  .amdhsa_user_sgpr_kernarg_segment_ptr 1
  .amdhsa_system_sgpr_workgroup_id_x 1
.end_amdhsa_kernel
'''
    if opt.get('list') in (1, 2, 4):
        s += '''.text
.globl empty_kernel
.p2align 8
.type empty_kernel,@function
empty_kernel:
''' + spinner(opt) + '''  s_endpgm
.section .rodata,"a"
.p2align 6
.amdhsa_kernel empty_kernel
  .amdhsa_next_free_vgpr 8
  .amdhsa_next_free_sgpr 16
  .amdhsa_accum_offset 8
  .amdhsa_group_segment_fixed_size 0
  .amdhsa_kernarg_size 104
  .amdhsa_user_sgpr_count 2
  .amdhsa_user_sgpr_kernarg_segment_ptr 1
  .amdhsa_system_sgpr_workgroup_id_x 1
.end_amdhsa_kernel
'''
    return s


if __name__ == '__main__':
    out = sys.argv[1]
    opt = {}
    for a in sys.argv[2:]:
        k, v = a.split('=')
        opt[k] = v if k == 'sn' else int(v)
    open(out, 'w').write(emit(opt))
```
